```python
import torch

def _softmax(x, axis=-1):
    return torch.softmax(x, dim=axis)

def _gelu(x):
    return torch.nn.functional.gelu(x, approximate='tanh')

def _silu(x):
    return torch.nn.functional.silu(x)

def _sigmoid(x):
    return torch.sigmoid(x)

def _layernorm(x, axis=-1, eps=1e-05):
    m = x.mean(dim=axis, keepdim=True)
    v = x.var(dim=axis, keepdim=True, unbiased=False)
    return (x - m) / torch.sqrt(v + eps)

def _scatter_add(tgt, idx, src, axis=0):
    return tgt.clone().index_add_(axis, idx, src)

def _segment_sum(src, seg, n):
    out = torch.zeros((n,) + src.shape[1:], dtype=src.dtype)
    return out.index_add_(0, seg, src)

def _pad(x, pw):
    flat = tuple((v for pair in reversed(pw) for v in pair))
    return torch.nn.functional.pad(x, flat)
kernel_name = 'standalone__neighborhood_dinat__vision'

def setup_inputs():

    _w = lambda a: (lambda t: t.to(torch.bfloat16) if t.is_floating_point() else t)(torch.as_tensor(a))
    ks, dil, nh = (7, 2, 4)
    H = W = max(ks * dil, 224 // dil * dil)
    C = max(nh, 192 // nh * nh)
    return {'x': _w((lambda *s: torch.randn(*s, dtype=torch.bfloat16) * 0.2)(1, H, W, C)), 'wqkv': _w((lambda *s: torch.randn(*s, dtype=torch.bfloat16) * 0.2)(C, 3 * C)), 'wo': _w((lambda *s: torch.randn(*s, dtype=torch.bfloat16) * 0.4)(C, C)), 'rpb': _w((lambda *s: torch.randn(*s, dtype=torch.bfloat16) * 0.4)(nh, 2 * ks - 1, 2 * ks - 1))}

def reference(x, wqkv, wo, rpb):
    B, H, W, C = x.shape
    ks, dil, nh = (7, 2, 4)
    hd = C // nh
    scale = hd ** (-0.5)
    qkv = (x @ wqkv).reshape(B, H, W, 3, nh, hd)
    q = qkv[:, :, :, 0].clone()
    k = qkv[:, :, :, 1].clone()
    v = qkv[:, :, :, 2].clone()
    ih = torch.arange(H)
    iw = torch.arange(W)
    m = torch.arange(ks)
    sh = torch.clip(ih // dil - ks // 2, 0, H // dil - ks)
    sw = torch.clip(iw // dil - ks // 2, 0, W // dil - ks)
    kh = (sh[:, None] + m[None, :]) * dil + (ih % dil)[:, None]
    kw = (sw[:, None] + m[None, :]) * dil + (iw % dil)[:, None]
    rh = sh[:, None] + m[None, :] - (ih // dil)[:, None] + (ks - 1)
    rw = sw[:, None] + m[None, :] - (iw // dil)[:, None] + (ks - 1)
    ih4 = kh[:, :, None, None].clone()
    iw4 = kw[None, None, :, :].clone()
    kg = (lambda x, *d: x.permute(*d))(k[:, ih4, iw4, :, :], 0, 1, 3, 5, 2, 4, 6).reshape(B, H, W, nh, ks * ks, hd)
    vg = (lambda x, *d: x.permute(*d))(v[:, ih4, iw4, :, :], 0, 1, 3, 5, 2, 4, 6).reshape(B, H, W, nh, ks * ks, hd)
    bg = (lambda x, *d: x.permute(*d))(rpb[:, rh[:, :, None, None], rw[None, None, :, :]], 1, 3, 0, 2, 4).reshape(1, H, W, nh, ks * ks)
    logits = torch.einsum('bhwnd,bhwnkd->bhwnk', q, kg) * scale + bg
    attn = _softmax(logits, axis=-1)
    out = torch.einsum('bhwnk,bhwnkd->bhwnd', attn, vg).reshape(B, H, W, C)
    return out @ wo
```

```python
import sys

VALU = ("valu", "trans", "perm", "rfl")
DS = ("dsr", "dsw")
VM = ("dma", "vld", "vst")
MEM = DS + VM


def V(a, n=1):
    return [f"v{i}" for i in range(a, a + n)]


def A(a, n=1):
    return [f"a{i}" for i in range(a, a + n)]


def rs(regs):
    if len(regs) == 1:
        return regs[0]
    p = regs[0][0]
    lo, hi = int(regs[0][1:]), int(regs[-1][1:])
    assert hi - lo + 1 == len(regs) and all(r[0] == p for r in regs), regs
    return f"{p}[{lo}:{hi}]"


class Op:
    __slots__ = ("idx", "text", "kind", "rd", "wr", "lds", "rank", "srcc", "mop", "size", "preds", "succs", "npred",
                 "t", "w", "tc", "tag", "nb", "done", "stamp")

    def __init__(self, text, kind, rd=(), wr=(), lds=None, rank=1, srcc=None, mop=None, size=0, tag="", nb=0):
        self.text, self.kind = text, kind
        self.rd, self.wr = set(rd), set(wr)
        self.lds, self.rank, self.srcc, self.mop, self.size, self.tag, self.nb = lds, rank, srcc, mop, size, tag, nb
        self.preds, self.succs = {}, []
        self.done = False
        self.stamp = None


def edge_req(p, c, typ, reg):
    st, cy, wk = 0, 0, None
    pk, ck = p.kind, c.kind
    sreg = reg[0] not in "va" or reg == "vcc"
    if pk in VALU:
        if typ == "RAW":
            if sreg:
                st = 5 if ck in MEM else 2
                if ck == "rfl":
                    st = 4
            else:
                if ck == "mfma" or ck == "perm":
                    st = 2
                elif ck == "rfl":
                    st = 1
                elif pk == "trans" and ck != "trans":
                    st = 1
            if reg == "exec":
                st = 5
    elif pk == "mfma":
        if typ in ("RAW", "WAW"):
            if ck == "mfma":
                if c.srcc is not None and reg in c.srcc and reg not in (c.rd - set(c.srcc)):
                    same = tuple(c.srcc) == tuple(sorted(p.wr, key=lambda r: int(r[1:]))) and c.mop == p.mop
                    st = 0 if same else 6
                elif typ == "WAW":
                    st = 6
                else:
                    st = 8
            else:
                st = 8
        elif typ == "WAR":
            if ck in VALU and p.srcc is not None and reg in p.srcc:
                st = 3
    elif pk == "salu":
        if typ == "RAW" and reg == "m0" and ck == "dma":
            st = 1
        if typ == "RAW" and reg == "exec" and ck in ("mfma", "perm", "rfl"):
            st = 4
    elif pk == "dsr":
        if typ in ("RAW", "WAW"):
            wk = "lg"
    elif pk == "vld":
        if typ in ("RAW", "WAW"):
            wk = "vm"
    elif pk == "vst":
        if typ == "WAR" and p.size >= 12 and not sreg:
            st = 2
        if typ == "RAW":
            wk = "vm"
    return st, cy, wk


class Prog:
    def __init__(self):
        self.ops = []

    def add(self, op):
        op.idx = len(self.ops)
        self.ops.append(op)
        return op

    @staticmethod
    def _edge(p, c, st=0, cy=0, wk=None):
        if p is c:
            return
        o = c.preds.get(p)
        if o is None:
            c.preds[p] = [st, cy, wk]
            p.succs.append(c)
        else:
            o[0] = max(o[0], st)
            o[1] = max(o[1], cy)
            o[2] = o[2] or wk

    def build(self, inorder=False):
        lw, rdrs = {}, {}
        ldsops, bars = [], []
        prev = None
        for c in self.ops:
            for r in c.rd:
                p = lw.get(r)
                if p is not None:
                    self._edge(p, c, *edge_req(p, c, "RAW", r))
            for r in c.wr:
                p = lw.get(r)
                if p is not None:
                    self._edge(p, c, *edge_req(p, c, "WAW", r))
                for p in rdrs.get(r, ()):
                    self._edge(p, c, *edge_req(p, c, "WAR", r))
            for r in c.rd:
                rdrs.setdefault(r, []).append(c)
            for r in c.wr:
                lw[r] = c
                rdrs[r] = []
            if c.kind == "bar":
                if bars:
                    self._edge(bars[-1], c)
                bars.append(c)
            if c.lds:
                for p in ldsops:
                    for (lo, hi, rw, cls, plo, phi) in c.lds:
                        for (lo2, hi2, rw2, cls2, plo2, phi2) in p.lds:
                            if rw == "r" and rw2 == "r":
                                continue
                            if cls is not None and cls == cls2:
                                if plo < phi2 and plo2 < phi:
                                    wk = None
                                    if p.kind == "dma":
                                        wk = "vm"
                                    elif c.kind == "dma":
                                        wk = "lg"
                                    self._edge(p, c, 0, 0, wk)
                                continue
                            if lo < hi2 and lo2 < hi:
                                assert bars and bars[-1].idx > p.idx, \
                                    f"cross-wave LDS hazard without barrier:\n  {p.tag}: {p.text}\n  {c.tag}: {c.text}"
                                b = bars[-1]
                                self._edge(p, b, 0, 0, "vm" if p.kind == "dma" else "lg")
                                self._edge(b, c)
                ldsops.append(c)
            if inorder and prev is not None:
                self._edge(prev, c)
            prev = c


class Sched:
    LDS_LAT = 130
    VM_LAT = 900
    VM_PER = 110
    VM_MAX = 9

    def __init__(self):
        self.lines = []
        self.t = 0
        self.tmem = 0
        self.vb = 0
        self.mf = 0
        self.last = "salu"
        self.W = 0
        self.lgq, self.vmq = [], []
        self.vm_tc = 0
        self.stats = {}
        self.nmf = 0
        self.marks = []

    def t_issue(self, kind):
        t0 = self.t
        if kind in VALU or kind == "mfma":
            t0 = max(t0, self.vb)
        if kind == "mfma":
            t0 = max(t0, self.mf)
        if kind in MEM:
            t0 = max(t0, self.tmem)
            if self.last in VALU:
                t0 += 4
        return t0

    def after(self, kind, size, t0):
        vb = self.vb
        if kind == "mfma":
            return t0 + 4, t0 + 4, t0 + 8
        if kind == "trans":
            return t0 + 8, t0 + 8, t0 + 8
        if kind in VALU:
            return t0 + 4, t0 + 4, t0 + 4
        if kind in ("dsr", "dma", "vld"):
            return t0 + 4, t0 + 5, max(vb, t0 + 8)
        if kind in ("dsw", "vst"):
            d = {4: 12, 8: 16, 12: 28, 16: 40}[size] if kind == "dsw" else {4: 12, 8: 12, 12: 16, 16: 16}[size]
            return t0 + d - 4, t0 + d - 4, max(vb, t0 + d)
        return t0 + 4, t0 + 4, vb

    def _emit(self, text, kind, size=0, ws=1):
        t0 = self.t_issue(kind)
        self.t, self.tmem, self.vb = self.after(kind, size, t0)
        if kind == "mfma":
            self.mf = t0 + 16
            self.nmf += 1
        if ws > 1:
            self.t += 4 * (ws - 1)
        self.last = kind
        self.W += ws
        self.lines.append("    " + text)
        self.stats[kind] = self.stats.get(kind, 0) + 1
        return t0

    def raw(self, text):
        self.lines.append(text)

    def wait(self, lg=None, vm=None):
        parts = []
        tt = 0
        if vm is not None:
            vm = min(vm, 63)
            k = len(self.vmq) - vm
            for o in self.vmq[:k]:
                o.done = True
                tt = max(tt, o.tc)
            self.vmq = self.vmq[k:]
            parts.append(f"vmcnt({vm})")
        if lg is not None:
            lg = min(lg, 15)
            k = len(self.lgq) - lg
            for o in self.lgq[:k]:
                o.done = True
                tt = max(tt, o.tc)
            self.lgq = self.lgq[k:]
            parts.append(f"lgkmcnt({lg})")
        self._emit("s_waitcnt " + " ".join(parts), "wait")
        if tt > self.t:
            self.stats["stall"] = self.stats.get("stall", 0) + tt - self.t
            self.t = tt

    def issue(self, op):
        t0 = self._emit(op.text, op.kind, op.size)
        op.t, op.w = t0, self.W
        if op.kind in DS:
            op.tc = max(t0 + self.LDS_LAT, (self.lgq[-1].tc + 8) if self.lgq else 0)
            self.lgq.append(op)
        elif op.kind in VM:
            per = self.VM_PER if op.size >= 8 else 16
            self.vm_tc = max(t0 + self.VM_LAT, self.vm_tc + per)
            op.tc = self.vm_tc
            self.vmq.append(op)
        if op.kind == "bar" or op.stamp is not None:
            self.marks.append((op.tag, t0, self.nmf))

    def block(self, op):
        st = 0
        ws = []
        for p, (s, cy, wk) in op.preds.items():
            if s:
                st = max(st, s - (self.W - p.w))
            if wk and not p.done:
                ws.append((wk, p))
        return st, ws

    def vm_outstanding(self):
        return sum(1 for o in self.vmq if o.tc > self.t and o.size >= 8)

    def run(self, prog, stampfn=None):
        ops = prog.ops
        for o in ops:
            o.npred = len(o.preds)
        avail = [o for o in ops if o.npred == 0]
        left = len(ops)

        def retire(o):
            nonlocal left
            avail.remove(o)
            left -= 1
            for s in o.succs:
                s.npred -= 1
                if s.npred == 0:
                    avail.append(s)
            if stampfn and o.stamp is not None:
                stampfn(self, o)

        while left:
            avail.sort(key=lambda o: (o.rank, o.idx))
            ready, wblocked, sblocked = [], [], []
            for o in avail:
                st, ws = self.block(o)
                if ws:
                    wblocked.append((o, ws))
                elif st > 0:
                    sblocked.append((o, st))
                elif o.nb > self.t or (o.kind in VM and o.size >= 8 and self.vm_outstanding() >= self.VM_MAX):
                    continue
                else:
                    ready.append(o)
            mf = [o for o in ready if o.kind == "mfma"]
            fl = [o for o in ready if o.kind != "mfma"]
            lgn = vmn = None
            for o, ws in wblocked:
                if all(p.tc <= self.t for _, p in ws):
                    for wk, p in ws:
                        if wk == "lg":
                            lgn = 1
                        else:
                            vmn = 1
            cw = None
            if lgn or vmn:
                lg = vm = None
                if lgn:
                    k = sum(1 for o in self.lgq if o.tc <= self.t)
                    lg = len(self.lgq) - k
                    if lg > 15:
                        lg = None
                if vmn:
                    k = sum(1 for o in self.vmq if o.tc <= self.t)
                    vm = len(self.vmq) - k
                if lg is not None or vm is not None:
                    cw = (lg, vm)
            mf_soon = bool(mf) or any(o.kind == "mfma" for o, _ in sblocked) or \
                any(o.kind == "mfma" and all(p.tc <= self.mf for _, p in ws) for o, ws in wblocked)
            if mf and max(self.t, self.vb) >= self.mf:
                self.issue(mf[0])
                retire(mf[0])
                continue

            def fits(kind, size):
                t0 = self.t_issue(kind)
                t, _, vb = self.after(kind, size, t0)
                return max(t, vb) <= self.mf

            free_slot = self.t < self.vb
            pick = None
            if mf_soon:
                need_wait_for_mfma = cw and not mf
                if free_slot or need_wait_for_mfma:
                    if need_wait_for_mfma:
                        self.wait(*cw)
                        continue
                    valu_ready = [o for o in fl if o.kind in VALU]
                    for o in fl:
                        if o.kind in MEM and (fits(o.kind, o.size) or (o.kind in ("dsw", "vst") and self.last == "mfma")):
                            pick = o
                            break
                    if pick is None:
                        for o in fl:
                            if o.kind in ("salu", "bar"):
                                pick = o
                                break
                    if pick is None and cw:
                        self.wait(*cw)
                        continue
                if pick is None:
                    for o in fl:
                        if o.kind in VALU and fits(o.kind, o.size):
                            pick = o
                            break
                if pick is None:
                    for o in fl:
                        if o.kind not in VALU and fits(o.kind, o.size):
                            pick = o
                            break
                if pick is None and cw and fits("wait", 0):
                    self.wait(*cw)
                    continue
                if pick is None and mf:
                    pick = mf[0]
            if pick is None:
                if cw and (free_slot or not fl):
                    self.wait(*cw)
                    continue
                if fl:
                    pick = fl[0]
                    if free_slot:
                        for o in fl:
                            if o.kind not in VALU:
                                pick = o
                                break
            if pick is not None:
                self.issue(pick)
                retire(pick)
                continue
            if sblocked:
                n = min(st for _, st in sblocked)
                self._emit(f"s_nop {n - 1}", "nop", ws=n)
                self.stats["nopws"] = self.stats.get("nopws", 0) + n
                continue
            cands = []
            for o, ws in wblocked:
                cands.append(max(p.tc for _, p in ws))
            for o in avail:
                if o.nb > self.t:
                    cands.append(o.nb)
            for o in self.vmq:
                if o.tc > self.t:
                    cands.append(o.tc)
                    break
            cands = [c for c in cands if c > self.t]
            if cands:
                nt = min(cands)
                self.stats["stall"] = self.stats.get("stall", 0) + nt - self.t
                self.t = nt
            else:
                self.wait(lg=15)

    def settle(self):
        self.wait(lg=0, vm=None)
        self._emit("s_nop 7", "nop", ws=8)

    def text(self):
        return "\n".join(self.lines) + "\n"
```

```python
import math
import os
import struct
import sys

sys.path.insert(0, os.path.dirname(os.path.abspath(__file__)))
from sched import Op, Prog, Sched, V, A, rs

NAME = "standalone__neighborhood_dinat__vision"
PROF = os.environ.get("PROF")
STFLAG = os.environ.get("STFLAG", "")
FORCE_SAFE = os.environ.get("FORCE_SAFE")

ROW = 7680
STG = 92160
STGW = 12288
NPIECE = 4
SP = 122880
SLOT = 6656
OP = 416
MID = 30720
DUMMY = 142848
FLAG = 143360
NEGB = 145344
EB = NEGB + 512
ERP = 448
EHS = 4480
LDS_TOTAL = 163840

VB = 0
KB = 90
NK = 13
QB = 168
PB = 180
SB = 196
NS = 4
OB = 212
ACCB = 228
NACC = 3
KX = (240, 241)
QX = (242, 243)
EA = (244, 245, 246)
OW, MX, OR, ST0, ST1 = 247, 248, 249, 250, 251
TA0, TA1, TP0, TP1 = 252, 253, 254, 255
OW2 = ST1
WT = (OR, ST0)
XD = (168, 169, 170, 171)
WD = (172, 173, 174)
BOUNCE = (24, 54, 84)
WDO = (28, 29, 58)
WTO = (59, 88)
WSA = 89
WK, WV, WQ = 0, 72, 144
XR = 216
NXR = 8
ONES = 248
STASH = 252

SX, SW, SWO, SRPB, SOUT, SWS = 4, 8, 12, 16, 20, 24
S_W, S_STG, S_RP, S_CP, S_ORG, S_BR, S_BC, S_FR, S_FC, S_EH, S_C, S_96 = [f"s{i}" for i in range(28, 40)]
S_XB = [f"s{i}" for i in range(40, 45)]
S_XG = "s45"
S_XL = "s46"
S_BAD = "s47"
S_RB = "s48"
S_RS = "s49"


def f32bits(x):
    return struct.unpack("<I", struct.pack("<f", x))[0]


NEG = f32bits(-1e30)
LOG2E = math.log2(math.e)


def isreg(x):
    return isinstance(x, str) and (x in ("vcc", "m0", "scc") or (x[0] in "vas" and x[1:].isdigit()))


def fmt(x):
    if isinstance(x, int):
        return str(x) if -16 <= x <= 64 else hex(x & 0xFFFFFFFF)
    return x


class G:
    def __init__(self):
        self.p = Prog()
        self.rank = 1
        self.tag = ""
        self.st = 0

    def add(self, text, kind, rd=(), wr=(), **kw):
        kw.setdefault("rank", self.rank)
        return self.p.add(Op(text, kind, rd, wr, tag=self.tag, **kw))

    def valu(self, op, d, *src, kind="valu", **kw):
        d = f"v{d}" if isinstance(d, int) else d
        rd = [s for s in src if isreg(s)]
        return self.add(f"{op} {d}, " + ", ".join(fmt(s) for s in src), kind, rd, [d], **kw)

    def cmp(self, op, a, b):
        return self.add(f"{op} vcc, {fmt(a)}, {fmt(b)}", "valu", [s for s in (a, b) if isreg(s)], ["vcc"])

    def cnd(self, d, f, t):
        return self.add(f"v_cndmask_b32 v{d}, {fmt(f)}, {fmt(t)}, vcc", "valu",
                        [s for s in (f, t) if isreg(s)] + ["vcc"], [f"v{d}"])

    def cndk(self, d, k, t):
        self.valu("v_add_u32", d, -k, t)
        self.cnd(d, 0, f"v{d}")
        self.valu("v_add_u32", d, k, f"v{d}")

    def salu(self, op, d, *src, **kw):
        rd = [s for s in src if isreg(s)]
        wr = [d] if d else []
        return self.add(f"{op} " + ", ".join(fmt(s) for s in ([d] if d else []) + list(src)), "salu", rd, wr, **kw)

    def stmp(self):
        self.st = (self.st + 1) % 16
        return f"s{50 + self.st}"

    def mfma(self, d, a, b, c, **kw):
        op = "v_mfma_f32_16x16x32_bf16" if len(a) == 4 else "v_mfma_f32_16x16x16_bf16"
        rd = list(a) + list(b) + (list(c) if c else [])
        return self.add(f"{op} {rs(d)}, {rs(a)}, {rs(b)}, {rs(c) if c else '0'}", "mfma", rd, d,
                        srcc=tuple(c) if c else None, mop=op, **kw)

    def dsr(self, op, d, addr, off, lds, **kw):
        assert 0 <= off < 65536, off
        return self.add(f"{op} {rs(d)}, v{addr} offset:{off}", "dsr", [f"v{addr}"], d, lds=lds, **kw)

    def dsw(self, op, addr, src, off, lds, **kw):
        assert 0 <= off < 65536, off
        return self.add(f"{op} v{addr}, {rs(src)} offset:{off}", "dsw", [f"v{addr}"] + list(src), [], lds=lds,
                        size=4 * len(src), **kw)

    def srd(self, s):
        return [f"s{s + i}" for i in range(4)]

    def dma(self, voff, srd, soff, lds, **kw):
        return self.add(f"buffer_load_dwordx4 v{voff}, s[{srd}:{srd + 3}], {soff} offen lds", "dma",
                        [f"v{voff}", "m0"] + self.srd(srd) + ([soff] if isreg(soff) else []), [], lds=lds, size=16, **kw)

    def vld(self, op, d, voff, srd, soff, off=0, size=16, **kw):
        o = f" offset:{off}" if off else ""
        return self.add(f"{op} {rs(d)}, v{voff}, s[{srd}:{srd + 3}], {soff} offen{o}", "vld",
                        [f"v{voff}"] + self.srd(srd) + ([soff] if isreg(soff) else []), d, size=size, **kw)

    def vst(self, op, src, voff, srd, soff, off=0, flags="", **kw):
        o = f" offset:{off}" if off else ""
        return self.add(f"{op} {rs(src)}, v{voff}, s[{srd}:{srd + 3}], {soff} offen{o}{flags}", "vst",
                        [f"v{voff}"] + list(src) + self.srd(srd) + ([soff] if isreg(soff) else []), [],
                        size=4 * len(src), **kw)

    def bar(self, name):
        o = self.add("s_barrier", "bar", rank=0)
        o.tag = name
        o.stamp = name
        return o

    def lane(self, d):
        self.valu("v_mbcnt_lo_u32_b32", d, -1, 0)
        self.valu("v_mbcnt_hi_u32_b32", d, -1, f"v{d}")


def v(i):
    return f"v{i}"


def xrow(r):
    return (r & 15) * ROW


def xrange_(r0, r1):
    return [(xrow(r), xrow(r) + ROW, "r", None, 0, 0) for r in range(r0, r1 + 1)]


def wdma_offsets(g, dst, pitch, lane, t0, t1, t2):
    for j in range(3):
        g.valu("v_add_u32", t0, 64 * j, v(lane))
        g.valu("v_mul_u32_u24", t1, 10923, v(t0))
        g.valu("v_lshrrev_b32", t1, 16, v(t1))
        g.valu("v_mul_u32_u24", t2, 6, v(t1))
        g.valu("v_sub_u32", t0, v(t0), v(t2))
        g.valu("v_lshrrev_b32", t2, 1, v(t1))
        g.valu("v_and_b32", t2, 4, v(t2))
        g.valu("v_xor_b32", t1, v(t1), v(t2))
        g.valu("v_mul_u32_u24", t1, pitch, v(t1))
        g.valu("v_lshl_add_u32", dst[j], v(t0), 4, v(t1))


def consts_early(g):
    g.lane(1)
    g.salu("s_lshl_b32", "s50", S_W, 1)
    g.salu("s_mul_i32", "s51", S_FC, 7)
    for j, g0 in enumerate((0, 64, 128, 32)):
        g.valu("v_add_u32", 2, g0, "v1")
        g.valu("v_mul_u32_u24", 3, 2731, "v2")
        g.valu("v_lshrrev_b32", 3, 16, "v3")
        g.valu("v_mul_u32_u24", 4, 24, "v3")
        g.valu("v_sub_u32", 2, "v2", "v4")
        g.valu("v_bfe_u32", 4, "v3", 1, 1)
        g.valu("v_or_b32", 4, "s50", "v4")
        g.valu("v_xor_b32", 2, "v2", "v4")
        g.valu("v_xor_b32", 3, "s51", "v3")
        g.valu("v_mul_u32_u24", 3, 768, "v3")
        g.valu("v_lshl_add_u32", XD[j], "v2", 4, "v3")
    wdma_offsets(g, WD, 1152, 1, 2, 3, 4)


def body(safe):
    g = G()
    R_EPI, R_A, R_BG = 0, 1, 2

    def xdma(T, stash=False):
        g.tag = f"xdma{T}"
        g.rank = 0
        lo = xrow(4 * T)
        for j in range(8):
            k, rj = (j // 3, j % 3) if j < 7 else (2, 3)
            so = S_XB[T]
            if k:
                so = g.stmp()
                if k == 1:
                    g.salu("s_add_u32", so, S_XB[T], S_XG)
                else:
                    g.salu("s_lshl1_add_u32", so, S_XG, S_XB[T])
            reg = XD[rj]
            if stash:
                reg = (TP0, TP1)[j & 1]
                g.valu("v_accvgpr_read_b32", reg, f"a{STASH + rj}")
            elif T == 0 and k == 0:
                reg = 5 + rj
                g.valu("v_add_u32", reg, so, v(XD[rj]))
                g.valu("v_max_i32", reg, 0, v(reg))
                so = "0"
            g.salu("s_add_u32", "m0", S_XL, lo + (1024 * j if j < 7 else 6656))
            u = 1000 * T + j
            g.dma(reg, SX, so, [(lo, lo + 4 * ROW, "w", "xd", u, u + 1)])

    pc = [0]

    def wpiece_dma(mat, p):
        g.tag = f"wdma{mat}.{p}"
        g.rank = 0
        sl = pc[0] % NPIECE
        pc[0] += 1
        so = g.stmp()
        if mat < 3:
            g.salu("s_add_u32", so, S_96, p * 32 * 1152 + 384 * mat)
        else:
            g.salu("s_add_u32", so, S_96, p * 32 * 384)
        for j in range(3):
            g.salu("s_add_u32", "m0", S_STG, sl * 3072 + 1024 * j)
            g.dma((WD if mat < 3 else WDO)[j], SW if mat < 3 else SWO, so,
                  [(STG, STG + 4 * STGW, "w", "stg", sl * 3072 + 1024 * j, sl * 3072 + 1024 * j + 1024)])
        return sl

    bc = [0]

    def wpiece_read(mat, p, sl):
        g.tag = f"wrd{mat}.{p}"
        g.rank = 0 if mat < 3 else R_BG
        lds = [(STG, STG + 4 * STGW, "r", "stg", sl * 3072, sl * 3072 + 3072)]
        for ct in range(3):
            f = ct * 6 + p
            if mat < 3:
                d = A({0: WQ, 1: WK, 2: WV}[mat] + 4 * f, 4)
                for half in range(2):
                    g.dsr("ds_read_b64_tr_b16", d[2 * half:2 * half + 2], WT[half], sl * 3072 + ct * 32, lds)
            else:
                d = V(BOUNCE[bc[0] % 3], 4)
                bc[0] += 1
                for half in range(2):
                    if ct < 2:
                        g.dsr("ds_read_b64_tr_b16", d[2 * half:2 * half + 2], WTO[half], sl * 3072 + ct * 8, lds)
                    else:
                        g.dsr("ds_read_b64_tr_b16", d[2 * half:2 * half + 2], WT[half], sl * 3072 + 64, lds)
                so = g.stmp()
                g.salu("s_mov_b32", so, f * 1024)
                o = g.vst("buffer_store_dwordx4", d, WSA, SWS, so)
                o.wr.add(f"ws{f}")

    wseq = [(m, p) for m in (1, 2, 0, 3) for p in range(6)]
    wslots = {}
    wi = [0, 0]

    def w_issue(n):
        for _ in range(n):
            if wi[0] < len(wseq):
                m, p = wseq[wi[0]]
                if m == 3 and p == 0:
                    wo_consts()
                wslots[(m, p)] = wpiece_dma(m, p)
                wi[0] += 1

    def w_step(n):
        for _ in range(n):
            m, p = wseq[wi[1]]
            wpiece_read(m, p, wslots[(m, p)])
            wi[1] += 1
            w_issue(1)

    def wo_consts():
        g.tag = "woc"
        g.rank = 0
        b = BOUNCE[0]
        g.lane(b)
        wdma_offsets(g, WDO, 384, b, b + 1, b + 2, b + 3)
        g.salu("s_mul_i32", "s66", S_W, 18432)
        g.valu("v_lshl_add_u32", WSA, v(b), 4, "s66")
        g.valu("v_and_b32", b, 3, v(b))
        for half in range(2):
            g.valu("v_lshl_add_u32", WTO[half], v(b), 3, v(WT[half]))

    g.tag = "pf"
    g.rank = 0
    if not safe:
        g.valu("v_lshl_add_u32", 8, S_W, 6, "v1")
        g.valu("v_lshlrev_b32", 9, 5, "v8")
        g.salu("s_lshr_b32", "s66", "s2", 3)
        g.salu("s_mul_i32", "s67", "s66", 6912)
        g.vld("buffer_load_dword", V(10), 9, SW, "s67", size=4)
        g.valu("v_lshlrev_b32", 11, 4, "v8")
        g.salu("s_mul_i32", "s67", "s66", 2304)
        g.vld("buffer_load_dword", V(10), 11, SWO, "s67", size=4).wr = set()
        g.valu("v_lshlrev_b32", 12, 3, "v8")
        g.salu("s_lshl_b32", "s67", "s66", 11)
        g.valu("v_add_u32", 12, "s67", "v12")
        g.add("global_load_dword v10, v12, s[68:69]", "vld", ["v12"], [], size=4)
    w_issue(1)
    xdma(0)
    w_issue(NPIECE - 1)

    g.tag = "consts"
    g.rank = 0
    L15, GG, QR, QC = 13, 14, 15, 16
    g.valu("v_and_b32", L15, 15, "v1")
    g.valu("v_lshrrev_b32", GG, 4, "v1")
    g.valu("v_lshrrev_b32", QR, 2, v(L15))
    g.valu("v_and_b32", QC, 3, v(L15))
    g.valu("v_and_b32", 17, 1, v(GG))
    g.valu("v_lshl_add_u32", 18, v(GG), 3, v(QR))
    for half in range(2):
        g.valu("v_xor_b32", 19, half, "v17")
        g.valu("v_lshl_add_u32", 19, "v19", 2, "v18")
        g.valu("v_mul_u32_u24", 19, 96, "v19")
        g.valu("v_lshl_add_u32", 19, v(QC), 3, "v19")
        g.valu("v_add_u32", WT[half], S_STG, "v19")

    def xaddr(dst, r, c, gg, t):
        g.valu("v_and_b32", t, 3, v(r))
        g.valu("v_mul_u32_u24", r, ROW, v(r))
        g.valu("v_lshlrev_b32", t, 1, v(t))
        g.valu("v_bfe_u32", dst[1], v(c), 1, 1)
        g.valu("v_or_b32", t, v(t), v(dst[1]))
        g.valu("v_xor_b32", t, v(t), v(gg))
        g.valu("v_lshl_add_u32", r, v(t), 4, v(r))
        g.valu("v_mul_u32_u24", t, 384, v(c))
        g.valu("v_add_u32", dst[0], v(r), v(t))
        g.valu("v_xor_b32", dst[1], 64, v(dst[0]))

    g.valu("v_mov_b32", 17, v(QR))
    xaddr(KX, 17, QC, GG, 18)
    g.rank = R_BG
    g.valu("v_add_u32", 17, 3, v(QR))
    g.valu("v_add_u32", 19, 3, v(QC))
    xaddr(QX, 17, 19, GG, 18)
    for j in range(4):
        g.valu("v_accvgpr_write_b32", f"a{STASH + j}", v(XD[j]))
    g.valu("v_mov_b32", 17, 0x3F803F80)
    for j in range(4):
        g.valu("v_accvgpr_write_b32", f"a{ONES + j}", "v17")
    g.valu("v_mov_b32", MX, 0)
    g.valu("v_mul_u32_u24", 17, OP, v(L15))
    g.valu("v_lshl_add_u32", 17, v(GG), 3, "v17")
    g.valu("v_add_u32", 17, S_96, "v17")
    g.valu("v_add_u32", OW, MID, "v17")
    g.valu("v_add_u32", OW2, SP, "v17")

    def ea_generic(first, qr, qc, gg, t0, t1):
        g.valu("v_sub_u32", t0, v(gg), v(qr))
        g.valu("v_mul_i32_i24", t0, ERP, v(t0))
        g.valu("v_lshlrev_b32", t1, 4, v(qc))
        g.valu("v_sub_u32", t0, v(t0), v(t1))
        g.valu("v_add_u32", t0, S_EH, v(t0))
        if first:
            g.valu("v_max_u32", t1, S_BR, v(qr))
            g.valu("v_sub_u32", t1, v(gg), v(t1))
        else:
            g.valu("v_sub_u32", t1, v(gg), v(qr))
        for rel in range(3):
            g.valu("v_add_u32", EA[rel], 4 * rel, v(t1))
            g.cmp("v_cmp_gt_u32", 7, v(EA[rel]))
            g.valu("v_add_u32", EA[rel], 48 + 4 * rel * ERP - NEGB, v(t0))
            g.cnd(EA[rel], 0, v(EA[rel]))
            g.valu("v_add_u32", EA[rel], NEGB, v(EA[rel]))

    ea_generic(True, QR, QC, GG, 17, 18)

    g.tag = "etab"
    g.rank = R_BG
    EV, EVO, EM, EAD, EW = 30, (50, 51), (52, 53), (60, 61), 62
    g.valu("v_min_u32", 20, 55, "v1")
    g.valu("v_lshlrev_b32", EW, 3, "v20")
    g.valu("v_add_u32", EW, S_EH, v(EW))
    g.valu("v_lshrrev_b32", 21, 1, "v20")
    g.valu("v_and_b32", 20, 1, "v20")
    g.valu("v_lshlrev_b32", 20, 1, "v20")
    g.valu("v_add_u32", 22, -12, "v21")
    g.cmp("v_cmp_lt_u32", 11, "v21")
    g.cnd(22, "v21", "v22")
    g.valu("v_mov_b32", 23, S_BC)
    g.cnd(23, 0, "v23")
    g.salu("s_lshl_b32", "s66", S_FC, 1)
    g.salu("s_sub_u32", "s66", 1, "s66")
    for jj in range(2):
        g.valu("v_add_u32", 63, jj, "v20")
        g.valu("v_add3_u32", 64, "v22", "v63", -6)
        g.valu("v_add_u32", 65, 3, "v64")
        g.valu("v_and_b32", 66, 12, "v22")
        g.valu("v_add3_u32", 66, "v66", "v63", -3)
        g.cmp("v_cmp_ne_u32", 0, "v23")
        g.cnd(65, "v65", "v66")
        g.cmp("v_cmp_gt_u32", 7, "v65")
        g.valu("v_mul_i32_i24", 64, "s66", "v64")
        g.valu("v_add_lshl_u32", 64, "v64", 6, 1)
        g.cnd(EVO[jj], 0, "v64")
        g.valu("v_mov_b32", 64, f32bits(LOG2E))
        g.cnd(EM[jj], 0, "v64")
        g.valu("v_mov_b32", 64, 0)
        g.valu("v_mov_b32", 65, NEG)
        g.cnd(EAD[jj], "v65", "v64")
    for i in range(10):
        so = g.stmp()
        g.salu("s_mul_i32", so, S_RS, i)
        g.salu("s_add_u32", so, so, S_RB)
        for jj in range(2):
            g.vld("buffer_load_ushort", V(EV + 2 * i + jj), EVO[jj], SRPB, so, size=2)
    for i in range(10):
        for jj in range(2):
            r = EV + 2 * i + jj
            g.valu("v_lshlrev_b32", r, 16, v(r))
            g.valu("v_fma_f32", r, v(r), v(EM[jj]), v(EAD[jj]))
        g.dsw("ds_write_b64", EW, V(EV + 2 * i, 2), i * ERP, [(EB, LDS_TOTAL, "w", "ew", i, i + 1)])
    g.valu("v_mov_b32", 64, NEG)
    g.valu("v_mov_b32", 65, NEG)
    g.valu("v_lshlrev_b32", 63, 3, "v1")
    g.valu("v_add_u32", 63, NEGB, "v63")
    g.dsw("ds_write_b64", 63, V(64, 2), 0, [(NEGB, EB, "w", "ew", 20, 21)])
    ELDS = [(NEGB, LDS_TOTAL, "r", None, 0, 0)]

    xp = [0]
    ap = [0]
    base = {KX: 0, QX: 0, (OR,): None}

    def rebase(regs, off, span=320):
        b = base[regs]
        if not (b <= off and off + span - b < 65536):
            nb = (off // 30720) * 30720
            g.rank = 0
            for r in regs:
                g.valu("v_add_u32", r, nb - b, v(r))
            base[regs] = b = nb
        return off - b

    def xfrag(addr, off, lds):
        d = A(XR + 4 * (xp[0] % NXR), 4)
        xp[0] += 1
        g.dsr("ds_read_b128", d, addr, off, lds, rank=0)
        return d

    def xfrags(pair, off, lds):
        return [xfrag(pair[ks & 1], off + (ks >> 1) * 128, lds) for ks in range(6)]

    def acc():
        d = V(ACCB + 4 * (ap[0] % NACC), 4)
        ap[0] += 1
        return d

    def wf(wb, ct, ks):
        return A(wb + 4 * (ct * 6 + ks), 4)

    kslot = {}
    kfree = list(range(NK))

    def cvt(d, a, b, rank=R_EPI):
        g.valu("v_cvt_pk_bf16_f32", d, a, b, rank=rank)

    def k_epi(r, c, ct, ac):
        kb = KB + 6 * kslot[(r, c)] + 2 * ct
        cvt(kb, ac[0], ac[1])
        cvt(kb + 1, ac[2], ac[3])

    def v_epi(r, c, ct, ac):
        for m in range(2):
            cvt(VB + 30 * ct + (2 * c + m) * 3 + r % 3, ac[2 * m], ac[2 * m + 1])

    def mm(kind, ac, ct, ks, xf):
        c = ac if ks else None
        if kind == "K":
            g.mfma(ac, wf(WK, ct, ks), xf, c, rank=1)
        elif kind == "V":
            g.mfma(ac, xf, wf(WV, ct, ks), c, rank=1)
        else:
            g.mfma(ac, wf(WQ, ct, ks), xf, c, rank=1)

    def kv_tile(r, c, kinds="KV"):
        g.tag = f"{kinds}{r}{c}"
        off = rebase(KX, xrow(4 * r) + 1536 * c)
        xf = xfrags(KX, off, xrange_(4 * r, 4 * r + 3))
        if "K" in kinds:
            kslot[(r, c)] = kfree.pop(0)
        for kind in kinds:
            for ct in range(3):
                ac = acc()
                for ks in range(6):
                    mm(kind, ac, ct, ks, xf[ks])
                (k_epi if kind == "K" else v_epi)(r, c, ct, ac)

    ga = [0]

    def group(kind, tiles):
        g.tag = f"g{kind}{tiles[0]}"
        accs = {}
        for t in tiles:
            if kind == "K":
                kslot[t] = kfree.pop(0)
            for ct in range(3):
                accs[t + (ct,)] = V(PB + 4 * (ga[0] % 12), 4)
                ga[0] += 1
        for ks in range(6):
            for (r, c) in tiles:
                off = rebase(KX, xrow(4 * r) + 1536 * c)
                xf = xfrag(KX[ks & 1], off + (ks >> 1) * 128, xrange_(4 * r, 4 * r + 3))
                for ct in range(3):
                    mm(kind, accs[(r, c, ct)], ct, ks, xf)
        for (r, c) in tiles:
            for ct in range(3):
                (k_epi if kind == "K" else v_epi)(r, c, ct, accs[(r, c, ct)])

    slots = {"00": SP, "01": SP + SLOT, "02": SP + 2 * SLOT}
    for k, n in enumerate(("s01", "10", "11", "12", "20", "21", "22", "s2", "b1", "b2")):
        slots[n] = MID + k * SLOT

    def oc(n, rw):
        return [(slots[n], slots[n] + SLOT, rw, "oc", slots[n], slots[n] + SLOT)]

    def ow(n):
        return (OW2, slots[n] - SP) if slots[n] >= SP else (OW, slots[n] - MID)

    qreg = {}
    qp = [0]

    def qalloc(n):
        qreg[n] = QB + 6 * (qp[0] % 2)
        qp[0] += 1
        return qreg[n]

    def lanebits(t):
        g.lane(t)

    def q_xf(n):
        g.rank = 0
        if n[0] in "012":
            b, j = int(n[0]), int(n[1])
            off = rebase(QX, b * 4 * ROW + j * 1536)
            return xfrags(QX, off, xrange_(3 + 4 * b, 6 + 4 * b))
        if n == "s2":
            off = rebase(QX, 2 * 4 * ROW + 3 * 1536)
            return xfrags(QX, off, xrange_(11, 14))
        if n == "s01":
            off = rebase(QX, 3 * 1536, span=320)
            lanebits(TP0)
            g.valu("v_bfe_u32", TP0, v(TP0), 1, 1)
            g.valu("v_lshlrev_b32", TP1, 4, v(TP0))
            g.valu("v_xor_b32", TP1, v(TP1), v(QX[0]))
            g.valu("v_mul_u32_u24", TP0, 4 * ROW - 768, v(TP0))
            g.valu("v_add_u32", TP0, v(TP0), v(TP1))
            g.valu("v_xor_b32", TP1, 64, v(TP0))
            return xfrags((TP0, TP1), off, xrange_(3, 10))
        if n == "b1":
            t = acc()
            t = [int(x[1:]) for x in t]
            lanebits(t[0])
            g.valu("v_lshrrev_b32", t[1], 4, v(t[0]))
            g.valu("v_bfe_u32", t[2], v(t[0]), 2, 1)
            g.valu("v_add_u32", t[2], 15, v(t[2]))
            g.valu("v_and_b32", t[2], 15, v(t[2]))
            g.valu("v_bfe_u32", t[3], v(t[0]), 3, 1)
            g.valu("v_and_b32", t[0], 3, v(t[0]))
            g.valu("v_lshl_add_u32", t[0], v(t[3]), 2, v(t[0]))
            g.valu("v_add_u32", t[0], 3, v(t[0]))
            xaddr(QX, t[2], t[0], t[1], t[3])
            base[QX] = 0
        return xfrags(QX, 0 if n == "b1" else 8 * 384, xrange_(15, 16))

    pend = {}

    def q_reads(n):
        g.tag = f"Q{n}"
        pend[n] = q_xf(n)

    def q_blk(n, park=False, keep=True):
        g.tag = f"Q{n}"
        xf = pend.pop(n) if n in pend else q_xf(n)
        qb = qalloc(n) if keep else None
        for ct in range(3):
            ac = acc()
            for ks in range(6):
                mm("Q", ac, ct, ks, xf[ks])
            for i in range(4):
                g.valu("v_mul_f32", ac[i], S_C, ac[i], rank=R_EPI)
            d = V(qb + 2 * ct, 2) if keep else ac[:2]
            cvt(d[0], ac[0], ac[1])
            cvt(d[1], ac[2], ac[3])
            if park:
                a, o = ow(n)
                g.dsw("ds_write_b64", a, d, o + 32 * ct, oc(n, "w"), rank=R_EPI)

    def wo_load():
        g.tag = "wo"
        g.rank = 0
        lanebits(TP0)
        g.salu("s_mul_i32", "s66", S_W, 18432)
        g.valu("v_lshl_add_u32", TP0, v(TP0), 4, "s66")
        for f in range(18):
            so = g.stmp()
            g.salu("s_mov_b32", so, (f >> 2) * 4096)
            o = g.vld("buffer_load_dwordx4", A(WQ + 4 * f, 4), TP0, SWS, so, off=(f & 3) * 1024)
            o.rd.add(f"ws{f}")
        lanebits(TP1)
        g.valu("v_and_b32", OR, 15, v(TP1))
        g.valu("v_mul_u32_u24", OR, OP, v(OR))
        g.valu("v_lshrrev_b32", TP1, 4, v(TP1))
        g.valu("v_lshl_add_u32", OR, v(TP1), 4, v(OR))
        base[(OR,)] = 0

    stpos = [None]

    def st_addr(n):
        g.rank = 0
        full = n[0] in "012"
        if full and stpos[0] is not None:
            b, j = int(n[0]), int(n[1])
            db, dj = b - stpos[0][0], j - stpos[0][1]
            s0, s1 = g.stmp(), g.stmp()
            g.salu("s_mul_i32", s0, S_RP, 4 * db)
            g.salu("s_mul_i32", s1, S_CP, 4 * dj)
            g.salu("s_add_u32", s0, s0, s1)
            g.valu("v_add_u32", ST0, s0, v(ST0))
            g.valu("v_add_u32", ST1, s0, v(ST1))
            stpos[0] = (b, j)
            return
        lanebits(TP0)
        s0, s1 = g.stmp(), g.stmp()
        if full or n == "s2":
            b, j = (int(n[0]), int(n[1])) if full else (2, 3)
            r0, c0 = 3 + 4 * b, 3 + 4 * j
            g.valu("v_bfe_u32", TP1, v(TP0), 2, 2)
            g.valu("v_mul_i32_i24", ST0, S_RP, v(TP1))
            g.valu("v_and_b32", TP1, 3, v(TP0))
        elif n == "s01":
            r0, c0 = 3, 15
            g.valu("v_bfe_u32", TP1, v(TP0), 2, 2)
            g.valu("v_lshlrev_b32", ST0, 1, v(TP0))
            g.valu("v_and_or_b32", TP1, v(ST0), 4, v(TP1))
            g.valu("v_mul_i32_i24", ST0, S_RP, v(TP1))
            g.valu("v_and_b32", TP1, 1, v(TP0))
        else:
            r0, c0 = 15, (3 if n == "b1" else 11)
            g.valu("v_bfe_u32", TP1, v(TP0), 2, 1)
            g.valu("v_mul_i32_i24", ST0, S_RP, v(TP1))
            g.valu("v_lshrrev_b32", TP1, 1, v(TP0))
            g.valu("v_and_b32", TP1, 4, v(TP1))
            g.valu("v_and_or_b32", TP1, v(TP0), 3, v(TP1))
        g.valu("v_mad_i32_i24", ST0, v(TP1), S_CP, v(ST0))
        g.salu("s_mul_i32", s0, S_RP, r0)
        g.salu("s_mul_i32", s1, S_CP, c0)
        g.salu("s_add_u32", s0, s0, s1)
        g.salu("s_add_u32", s0, s0, S_ORG)
        g.salu("s_add_u32", s0, s0, S_96)
        g.valu("v_add_u32", ST0, s0, v(ST0))
        if n in ("s2", "b2"):
            g.cmp("v_cmp_gt_u32", 2 if n == "s2" else 6, v(TP1))
            g.cndk(ST0, 0x80000000, v(ST0))
        g.valu("v_lshrrev_b32", TP0, 4, v(TP0))
        g.valu("v_lshl_add_u32", ST1, v(TP0), 3, v(ST0))
        g.valu("v_lshl_add_u32", ST0, v(TP0), 4, v(ST0))
        stpos[0] = (int(n[0]), int(n[1])) if full else None

    def o_blk(n):
        g.tag = f"O{n}"
        off = rebase((OR,), slots[n], span=400)
        lds = [(slots[n], slots[n] + SLOT, "r", None, 0, 0)]
        xf = [xfrag(OR, off + 64 * ks, lds) for ks in range(6)]
        st_addr(n)
        a0 = None
        for ct in range(3):
            ac = acc()
            for ks in range(6):
                mm("Q", ac, ct, ks, xf[ks])
            if ct == 0:
                cvt(ac[0], ac[0], ac[1])
                cvt(ac[1], ac[2], ac[3])
                a0 = ac
            elif ct == 1:
                cvt(a0[2], ac[0], ac[1])
                cvt(a0[3], ac[2], ac[3])
                g.vst("buffer_store_dwordx4", a0, ST0, SOUT, "0", flags=STFLAG, rank=R_EPI)
            else:
                cvt(ac[0], ac[0], ac[1])
                cvt(ac[1], ac[2], ac[3])
                g.vst("buffer_store_dwordx2", ac[:2], ST1, SOUT, "0", off=64, flags=STFLAG, rank=R_EPI)

    sp = [0]
    pq = [0]
    pzero = set()

    def attn(n):
        g.tag = f"A{n}"
        g.rank = R_A
        qn = "s01" if n in ("s0", "s1") else n
        mask = None
        if n[0] in "012":
            b, j = int(n[0]), int(n[1])
            rows, cols = (b, b + 1, b + 2), [(j, 2), (j + 1, 2), (j + 2, 1)]
            eoff = 192 if j == 0 else 0
            frees = [(b, j)]
        elif n[0] == "s":
            b, j = int(n[1]), 3
            rows, cols = (b, b + 1, b + 2), [(3, 2), (4, 2)]
            eoff = 32 if n == "s1" else 0
            mask = {"s0": 0, "s1": 1}.get(n)
            frees = [(b, 3), (b, 4)]
        else:
            b, j = 3, (0 if n == "b1" else 2)
            rows = (3, 4)
            cols = [(0, 2), (1, 2), (2, 2), (3, 1)] if n == "b1" else [(2, 2), (3, 2), (4, 2)]
            eoff = 0
            frees = []
        if n == "10":
            g.lane(TA0)
            t = [int(x[1:]) for x in V(SB + 4 * (sp[0] % NS), 4)]
            g.valu("v_bfe_u32", t[0], v(TA0), 2, 2)
            g.valu("v_and_b32", t[1], 3, v(TA0))
            g.valu("v_lshrrev_b32", TA0, 4, v(TA0))
            ea_generic(False, t[0], t[1], TA0, t[2], t[3])
        if n == "b1":
            g.lane(TA0)
            t = [int(x[1:]) for x in V(SB + 4 * (sp[0] % NS), 4)]
            g.valu("v_bfe_u32", t[0], v(TA0), 2, 1)
            g.valu("v_lshrrev_b32", t[1], 1, v(TA0))
            g.valu("v_and_b32", t[1], 4, v(t[1]))
            g.valu("v_and_or_b32", t[1], v(TA0), 3, v(t[1]))
            g.valu("v_bfe_u32", TA1, v(TA0), 3, 1)
            g.valu("v_lshrrev_b32", TA0, 4, v(TA0))
            ea_generic(False, t[0], t[1], TA0, t[2], t[3])
            g.valu("v_xor_b32", TA1, 1, v(TA1))
            g.valu("v_mul_u32_u24", EA[2], 192, v(TA1))
            for rel in range(2):
                g.valu("v_add_u32", EA[rel], v(EA[rel]), v(EA[2]))
        if n == "b2":
            for rel in range(2):
                g.valu("v_sub_u32", EA[rel], v(EA[rel]), v(EA[2]))
        if qn not in qreg:
            qb = qalloc(qn)
            a, o = ow(qn)
            for ct in range(3):
                g.dsr("ds_read_b64", V(qb + 2 * ct, 2), a, o + 32 * ct, oc(qn, "r"), rank=0)
        qb = qreg.pop(qn)
        vbase = 6 * j
        tiles = [(r, c, nh) for (c, nh) in cols for r in rows]
        used = {(2 * c + m) * 3 + r % 3 - vbase for (r, c, nh) in tiles for m in range(nh)}
        nst = (max(used) >> 2) + 1

        def s_tile(r, c):
            s = V(SB + 4 * (sp[0] % NS), 4)
            sp[0] += 1
            g.dsr("ds_read_b128", s, EA[r - b], eoff + (c - j) * 64, ELDS, rank=0)
            kb = KB + 6 * kslot[(r, c)]
            g.mfma(s, V(kb, 4), V(qb, 4), s, rank=0)
            g.mfma(s, V(kb + 4, 2), V(qb + 4, 2), s, rank=0)
            return s

        if safe:
            first = True
            for (r, c, nh) in tiles:
                s = s_tile(r, c)
                for m in range(nh):
                    if first:
                        g.valu("v_max_f32", MX, s[0], s[1])
                        first = False
                    else:
                        g.valu("v_max3_f32", MX, v(MX), s[2 * m], s[2 * m + 1])
            for which in (16, 32):
                g.valu("v_mov_b32", TA0, v(MX))
                g.add(f"v_permlane{which}_swap_b32 v{MX}, v{TA0}", "perm", [v(MX), v(TA0)], [v(MX), v(TA0)])
                g.valu("v_max_f32", MX, v(MX), v(TA0))

        def preg(idx):
            return PB + 4 * ((pq[0] + (idx >> 2)) % 4) + (idx & 3)

        written = set()
        step = 0
        for (r, c, nh) in tiles:
            s = s_tile(r, c)
            for i in range(2 * nh):
                if safe:
                    g.valu("v_sub_f32", s[i], s[i], v(MX))
                g.valu("v_exp_f32", s[i], s[i], kind="trans")
            for m in range(nh):
                idx = (2 * c + m) * 3 + r % 3 - vbase
                cvt(preg(idx), s[2 * m], s[2 * m + 1], rank=R_A)
                pzero.discard(preg(idx))
                written.add(idx)
            while step < nst and all((i in written) or (i not in used) for i in range(4 * step, 4 * step + 4)):
                for i in range(4 * step, 4 * step + 4):
                    if i not in used and preg(i) not in pzero:
                        g.valu("v_mov_b32", preg(i), 0)
                        pzero.add(preg(i))
                pr = V(preg(4 * step), 4)
                for td in range(3):
                    o = V(OB + 4 * td, 4)
                    g.mfma(o, V(VB + 30 * td + vbase + 4 * step, 4), pr, o if step else None, rank=0)
                o = V(OB + 12, 4)
                g.mfma(o, A(ONES, 4), pr, o if step else None, rank=0)
                step += 1
        assert step == nst
        pq[0] = (pq[0] + nst) % 4
        for t in frees:
            kfree.append(kslot.pop(t))
        g.rank = R_EPI
        g.valu("v_rcp_f32", TA0, v(OB + 12), kind="trans")
        if not safe:
            g.valu("v_max3_f32", MX, v(MX), v(OB + 12), v(TA0))
        a, off = ow(qn)
        if mask is not None:
            g.lane(TA1)
            g.valu("v_and_b32", TA1, 2, v(TA1))
            g.cmp("v_cmp_eq_u32", 2 * mask, v(TA1))
            g.cndk(TA1, DUMMY - off, v(a))
            a = TA1
        for td in range(3):
            o = V(OB + 4 * td, 4)
            for i in range(4):
                g.valu("v_mul_f32", o[i], o[i], v(TA0))
            cvt(o[0], o[0], o[1])
            cvt(o[1], o[2], o[3])
            g.dsw("ds_write_b64", a, o[:2], off + 32 * td, oc(qn, "w"))

    def flag_write():
        if safe:
            return
        g.tag = "flag"
        g.rank = 0
        g.valu("v_mov_b32", TA1, f32bits(2.0 ** 60))
        g.cmp("v_cmp_gt_f32", v(MX), v(TA1))
        g.add("s_cmp_lg_u64 vcc, 0\n    s_cselect_b32 s66, 1, 0", "salu", ["vcc"], ["s66"])
        g.valu("v_mov_b32", TA0, "s66")
        g.salu("s_lshl2_add_u32", "s67", S_W, FLAG)
        g.valu("v_mov_b32", TA1, "s67")
        g.dsw("ds_write_b32", TA1, V(TA0), 0, [(FLAG, FLAG + 16, "w", "fl", 0, 1)])

    def flag_read():
        if safe:
            return
        g.tag = "flagr"
        g.rank = R_BG
        g.valu("v_mov_b32", TA1, FLAG)
        s = V(SB, 4)
        g.dsr("ds_read_b128", s, TA1, 0, [(FLAG, FLAG + 16, "r", None, 0, 0)])
        g.valu("v_or3_b32", TA0, s[0], s[1], s[2])
        g.valu("v_or_b32", TA0, v(TA0), s[3])
        g.add(f"v_readfirstlane_b32 {S_BAD}, v{TA0}", "rfl", [v(TA0)], [S_BAD])

    w_step(2)
    xdma(1)
    w_step(4)
    g.bar("b1")
    group("K", [(0, c) for c in range(4)])
    xdma(2)
    g.bar("b2")
    for c in range(4):
        group("K", [(1, c)])
    w_step(6)
    g.bar("b3")
    for c in range(4):
        group("K", [(2, c)])
    w_step(6)
    for r in range(3):
        for c in range(3):
            group("V", [(r, c)])
    w_step(6)
    order = os.environ.get("ORDER", """
        Q00 V03 V13 V23 K04 Q01 b4 A00 X3 V04 T14 Q02 A01 T24 Rs01 b5 Ks01 X4 A02 T30 Q10 P11 R12 b6 P12 As0
        T31 T32 P20 P21 A10 T33 P22 Ps2 A11 T34 b7 Pb1 Pb2 WO A12 T40 O00 O01 As1 T41 T42 O02 A20 b8 T43 Os01 O10
        A21 T44 O11 O12 A22 b9 O20 O21 As2 Ab1 b10 O22 Os2 Ab2 FW b11 FR Ob1 Ob2""").split()
    for tk in order:
        c, n = tk[0], tk[1:]
        if tk == "WO":
            wo_load()
        elif tk == "FW":
            flag_write()
        elif tk == "FR":
            flag_read()
        elif tk == "Ks01":
            q_blk("s01", park=True, keep=True)
        elif c == "b":
            g.bar(tk)
        elif c == "X":
            xdma(int(n), stash=True)
        elif c == "Q":
            q_blk(n)
        elif c == "P":
            q_blk(n, park=True, keep=False)
        elif c == "R":
            q_reads(n)
        elif c == "A":
            attn(n)
        elif c == "O":
            o_blk(n)
        elif c in "KVT":
            kv_tile(int(n[0]), int(n[1]), {"T": "KV"}.get(c, c))
        else:
            raise ValueError(tk)
    return g


def prologue(s):
    s.raw("    s_cmp_ge_u32 s2, 0x100")
    s.raw("    s_cbranch_scc1 L_exit")
    if PROF:
        s.raw("    s_memtime s[70:71]")
    s.raw("    s_load_dwordx8 s[52:59], s[0:1], 0")
    s.raw("    s_load_dwordx2 s[60:61], s[0:1], 32")
    s.raw("    s_load_dwordx2 s[62:63], s[0:1], 48")
    s.raw("    s_getpc_b64 s[68:69]")
    g = G()
    g.valu("v_lshrrev_b32", 4, 6, "v0")
    g.add(f"v_readfirstlane_b32 {S_W}, v4", "rfl", ["v4"], [S_W])
    TH, TW, LAT, T0, T1 = "s64", "s65", "s66", "s67", "s3"
    g.salu("s_lshr_b32", T0, "s2", 6)
    g.salu("s_and_b32", T1, "s2", 1)
    g.salu("s_lshl_b32", T1, T1, 2)
    g.salu("s_or_b32", TH, T0, T1)
    g.salu("s_bfe_u32", TW, "s2", 0x30003)
    g.salu("s_bfe_u32", T0, "s2", 0x10002)
    g.salu("s_mul_i32", LAT, T0, 86016)
    g.salu("s_bfe_u32", T0, "s2", 0x10001)
    g.salu("s_mul_i32", T0, T0, 384)
    g.salu("s_add_u32", LAT, LAT, T0)
    g.salu("s_mul_i32", T0, TH, 14)
    g.salu("s_sub_u32", T0, T0, 3)
    g.salu("s_cmp_eq_u32", None, TH, 7)
    g.salu("s_cselect_b32", S_FR, 1, 0)
    g.salu("s_cselect_b32", T0, 114, T0)
    g.salu("s_mov_b32", T1, 172032)
    g.salu("s_cselect_b32", S_RP, -172032, T1)
    g.salu("s_cselect_b32", S_BR, 3, 0)
    g.salu("s_cselect_b32", S_RS, -26, 26)
    g.salu("s_cselect_b32", S_RB, 9, 3)
    g.salu("s_mul_i32", S_RB, S_RB, 26)
    g.salu("s_cmp_eq_u32", None, TH, 0)
    g.salu("s_cselect_b32", S_BR, 3, S_BR)
    g.salu("s_mul_i32", S_ORG, T0, 172032)
    g.salu("s_mul_i32", T0, TW, 14)
    g.salu("s_sub_u32", T0, T0, 3)
    g.salu("s_cmp_eq_u32", None, TW, 7)
    g.salu("s_cselect_b32", S_FC, 1, 0)
    g.salu("s_cselect_b32", S_BC, 1, 0)
    g.salu("s_cselect_b32", TH, 107, T0)
    g.salu("s_cselect_b32", T0, 114, T0)
    g.salu("s_mov_b32", T1, 768)
    g.salu("s_cselect_b32", S_CP, -768, T1)
    g.salu("s_cmp_eq_u32", None, TW, 0)
    g.salu("s_cselect_b32", S_BC, 1, S_BC)
    g.salu("s_lshl_b32", S_XG, S_CP, 3)
    g.salu("s_mul_i32", TH, TH, 768)
    g.salu("s_add_u32", TH, TH, LAT)
    g.salu("s_mul_i32", T1, S_RP, S_W)
    g.salu("s_add_u32", T1, T1, S_ORG)
    g.salu("s_max_i32", S_XB[0], T1, 0)
    g.salu("s_min_i32", S_XB[0], S_XB[0], 111 * 172032)
    g.salu("s_add_u32", S_XB[0], S_XB[0], TH)
    g.salu("s_add_u32", T1, T1, TH)
    for T in range(1, 5):
        g.salu("s_lshl2_add_u32", T1, S_RP, T1)
        g.salu("s_mov_b32", S_XB[T], T1)
    g.salu("s_mul_i32", T0, T0, 768)
    g.salu("s_add_u32", S_ORG, S_ORG, T0)
    g.salu("s_add_u32", S_ORG, S_ORG, LAT)
    g.salu("s_mul_i32", S_XL, S_W, ROW)
    g.salu("s_mul_i32", S_STG, S_W, STGW)
    g.salu("s_add_u32", S_STG, S_STG, STG)
    g.salu("s_mul_i32", S_96, S_W, 96)
    g.salu("s_mul_i32", S_EH, S_W, EHS)
    g.salu("s_add_u32", S_EH, S_EH, EB)
    g.salu("s_mul_i32", T0, S_W, 338)
    g.salu("s_add_u32", S_RB, S_RB, T0)
    g.salu("s_mov_b32", S_C, f32bits((48 ** -0.5) * LOG2E))
    consts_early(g)
    g.p.build(inorder=True)
    s.run(g.p)
    s.raw("    s_waitcnt lgkmcnt(0)")
    for srd, p, size in ((SX, 52, 19267584), (SW, 54, 221184), (SWO, 56, 73728), (SRPB, 58, 1352), (SOUT, 60, 19267584),
                         (SWS, 62, 0x1000000 if PROF else 73728)):
        s.raw(f"    s_mov_b32 s{srd}, s{p}")
        s.raw(f"    s_and_b32 s{srd + 1}, s{p + 1}, 0xffff")
        s.raw(f"    s_mov_b32 s{srd + 2}, {hex(size)}")
        s.raw(f"    s_mov_b32 s{srd + 3}, 0x20000")


def gen():
    s = Sched()
    prologue(s)
    nst = [1]

    def stampfn(sc, op):
        k = nst[0]
        nst[0] += 1
        sc.raw(f"    s_memtime s[{70 + 2 * k}:{71 + 2 * k}]")
        sc.wait(lg=0)

    if FORCE_SAFE:
        s.raw("    s_branch L_safe2")
    g = body(False)
    g.p.build()
    t0 = s.t
    s.run(g.p, stampfn if PROF else None)
    sys.stderr.write(f"fast: model cycles {s.t} mfma {s.nmf} ({16 * s.nmf}) stats {s.stats}\n")
    sys.stderr.write("marks: " + " ".join(f"{n}@{t}/{16 * m}" for n, t, m in s.marks) + "\n")
    if PROF:
        k = nst[0]
        s.raw(f"    s_memtime s[{70 + 2 * k}:{71 + 2 * k}]")
        s.raw("    s_waitcnt vmcnt(0)")
        s.raw(f"    s_memtime s[{72 + 2 * k}:{73 + 2 * k}]")
        s.raw("    s_waitcnt lgkmcnt(0)")
        s.raw("    s_nop 7")
        for i in range(k + 2):
            s.raw(f"    v_mov_b32 v{i}, s{70 + 2 * i}")
        s.raw("    s_lshl_b32 s50, s2, 2")
        s.raw(f"    s_add_u32 s50, s50, {S_W}")
        s.raw("    s_lshl_b32 s50, s50, 6")
        s.raw("    s_add_u32 s50, s50, 0x100000")
        s.raw("    v_mov_b32 v20, s50")
        for i in range(4):
            s.raw(f"    buffer_store_dwordx4 v[{4 * i}:{4 * i + 3}], v20, s[{SWS}:{SWS + 3}], 0 offen offset:{16 * i}")
    s.raw("    s_nop 4")
    s.raw(f"    s_cmp_lg_u32 {S_BAD}, 0")
    s.raw("    s_cbranch_scc1 L_safe")
    s.raw("L_exit:")
    s.raw("    s_endpgm")
    s.raw("L_safe:")
    s.raw("    s_waitcnt vmcnt(0) lgkmcnt(0)")
    s.raw("    s_nop 7")
    s.raw("    s_barrier")
    s2 = Sched()
    g = G()
    consts_early(g)
    g.p.build(inorder=True)
    s2.run(g.p)
    s2.raw("L_safe2:")
    g = body(True)
    g.p.build()
    s2.run(g.p)
    s2.raw("    s_endpgm")
    sys.stderr.write(f"safe: model cycles {s2.t} mfma {s2.nmf} stats {s2.stats}\n")

    head = f"""; Fused DiNAT neighborhood attention (QKV proj + 7x7 dilated NA + out proj), one 14x14 query tile per workgroup,
; @launch grid=(256,1,1) block=(256,1,1) lds={LDS_TOTAL}
.amdgcn_target "amdgcn-amd-amdhsa--gfx950"
.text
.globl {NAME}_kernel
.p2align 8
.type {NAME}_kernel,@function
{NAME}_kernel:
"""
    tail = f""".section .rodata,"a"
.p2align 6
.amdhsa_kernel {NAME}_kernel
  .amdhsa_next_free_vgpr 512
  .amdhsa_next_free_sgpr 102
  .amdhsa_accum_offset 256
  .amdhsa_group_segment_fixed_size 0
  .amdhsa_kernarg_size 56
  .amdhsa_user_sgpr_count 2
  .amdhsa_user_sgpr_kernarg_segment_ptr 1
  .amdhsa_system_sgpr_workgroup_id_x 1
.end_amdhsa_kernel
"""
    return head + s.text() + s2.text() + tail


if __name__ == "__main__":
    out = sys.argv[1] if len(sys.argv) > 1 else "k8.s"
    open(out, "w").write(gen())
```

```python
import os
import sys

VALU = ("valu", "trans", "perm", "rfl")
DS = ("dsr", "dsw")
VM = ("dma", "vld", "vst")
MEM = DS + VM


def V(a, n=1):
    return [f"v{i}" for i in range(a, a + n)]


def A(a, n=1):
    return [f"a{i}" for i in range(a, a + n)]


def rs(regs):
    if len(regs) == 1:
        return regs[0]
    p = regs[0][0]
    lo, hi = int(regs[0][1:]), int(regs[-1][1:])
    assert hi - lo + 1 == len(regs) and all(r[0] == p for r in regs), regs
    return f"{p}[{lo}:{hi}]"


class Op:
    __slots__ = ("idx", "text", "kind", "rd", "wr", "lds", "rank", "srcc", "mop", "size", "preds", "succs", "npred",
                 "t", "w", "tc", "tag", "nb", "done", "stamp", "gap", "lat")

    def __init__(self, text, kind, rd=(), wr=(), lds=None, rank=1, srcc=None, mop=None, size=0, tag="", nb=0):
        self.text, self.kind = text, kind
        self.rd, self.wr = set(rd), set(wr)
        self.lds, self.rank, self.srcc, self.mop, self.size, self.tag, self.nb = lds, rank, srcc, mop, size, tag, nb
        self.preds, self.succs = {}, []
        self.done = False
        self.stamp = None
        self.gap = 0
        self.lat = 0


def edge_req(p, c, typ, reg):
    st, cy, wk = 0, 0, None
    pk, ck = p.kind, c.kind
    sreg = reg[0] not in "va" or reg == "vcc"
    if pk in VALU:
        if typ == "RAW":
            if sreg:
                st = 5 if ck in MEM else 2
                if ck == "rfl":
                    st = 4
            else:
                if ck == "mfma" or ck == "perm":
                    st = 2
                elif ck == "rfl":
                    st = 1
                elif pk == "trans" and ck != "trans":
                    st = 1
            if reg == "exec":
                st = 5
    elif pk == "mfma":
        if typ in ("RAW", "WAW"):
            if ck == "mfma":
                if c.srcc is not None and reg in c.srcc and reg not in (c.rd - set(c.srcc)):
                    same = tuple(c.srcc) == tuple(sorted(p.wr, key=lambda r: int(r[1:]))) and c.mop == p.mop
                    st = 0 if same else 6
                elif typ == "WAW":
                    st = 6
                else:
                    st = 8
            else:
                st = 8
        elif typ == "WAR":
            if ck in VALU and p.srcc is not None and reg in p.srcc:
                st = 3
    elif pk == "salu":
        if typ == "RAW" and reg == "m0" and ck == "dma":
            st = 1
        if typ == "RAW" and reg == "exec" and ck in ("mfma", "perm", "rfl"):
            st = 4
    elif pk == "dsr":
        if typ in ("RAW", "WAW"):
            wk = "lg"
    elif pk == "vld":
        if typ in ("RAW", "WAW"):
            wk = "vm"
    elif pk == "vst":
        if typ == "WAR" and p.size >= 12 and not sreg:
            st = 2
        if typ == "RAW":
            wk = "vm"
    return st, cy, wk


class Prog:
    def __init__(self):
        self.ops = []

    def add(self, op):
        op.idx = len(self.ops)
        self.ops.append(op)
        return op

    @staticmethod
    def _edge(p, c, st=0, cy=0, wk=None):
        if p is c:
            return
        o = c.preds.get(p)
        if o is None:
            c.preds[p] = [st, cy, wk]
            p.succs.append(c)
        else:
            o[0] = max(o[0], st)
            o[1] = max(o[1], cy)
            o[2] = o[2] or wk

    def build(self, inorder=False):
        lw, rdrs = {}, {}
        ldsops, bars = [], []
        beta = {}
        prev = None
        for c in self.ops:
            for r in c.rd:
                p = lw.get(r)
                if p is not None:
                    self._edge(p, c, *edge_req(p, c, "RAW", r))
            for r in c.wr:
                p = lw.get(r)
                if p is not None:
                    self._edge(p, c, *edge_req(p, c, "WAW", r))
                for p in rdrs.get(r, ()):
                    self._edge(p, c, *edge_req(p, c, "WAR", r))
            for r in c.rd:
                rdrs.setdefault(r, []).append(c)
            for r in c.wr:
                lw[r] = c
                rdrs[r] = []
            if c.kind == "bar":
                if bars:
                    self._edge(bars[-1], c)
                bars.append(c)
            if c.lds:
                for p in ldsops:
                    for (lo, hi, rw, cls, plo, phi) in c.lds:
                        for (lo2, hi2, rw2, cls2, plo2, phi2) in p.lds:
                            if rw == "r" and rw2 == "r":
                                continue
                            if cls is not None and cls == cls2:
                                if plo < phi2 and plo2 < phi:
                                    wk = None
                                    if p.kind == "dma":
                                        wk = "vm"
                                    elif c.kind == "dma":
                                        wk = "lg"
                                    self._edge(p, c, 0, 0, wk)
                                continue
                            if lo < hi2 and lo2 < hi:
                                b = beta.get(p)
                                if b is None:
                                    assert bars and bars[-1].idx > p.idx, \
                                        f"cross-wave LDS hazard without barrier:\n  {p.tag}: {p.text}\n  {c.tag}: {c.text}"
                                    b = beta[p] = bars[-1]
                                    self._edge(p, b, 0, 0, "vm" if p.kind == "dma" else "lg")
                                self._edge(b, c)
                ldsops.append(c)
            if inorder and prev is not None:
                self._edge(prev, c)
            prev = c


class Sched:
    LDS_LAT = int(os.environ.get("LDS_LAT", 130))
    VM_LAT = int(os.environ.get("VM_LAT", 800))
    VM_PER = int(os.environ.get("VM_PER", 70))
    VM_MAX = int(os.environ.get("VM_MAX", 12))
    VM_GAP = int(os.environ.get("VM_GAP", 72))
    TA_Q = int(os.environ.get("TA_Q", 0))

    def __init__(self):
        self.lines = []
        self.t = 0
        self.tmem = 0
        self.vb = 0
        self.mf = 0
        self.last = "salu"
        self.W = 0
        self.lgq, self.vmq = [], []
        self.vm_tc = 0
        self.vm_next = 0
        self.ta = [0] * 8
        self.lds_tc = 0
        self.stats = {}
        self.nmf = 0
        self.marks = []
        self.smarks = []
        self.mstamps = set()

    def t_issue(self, kind):
        t0 = self.t
        if kind in VALU or kind == "mfma":
            t0 = max(t0, self.vb)
        if kind == "mfma":
            t0 = max(t0, self.mf)
        if kind in MEM:
            t0 = self.tmem if self.last in ("dsr", "dma", "vld") and self.t - self.tmem == 3 else max(t0, self.tmem)
            if self.last in VALU:
                t0 += 4
        return t0

    def after(self, kind, size, t0):
        vb = self.vb
        if kind == "mfma":
            return t0 + 4, t0 + 4, t0 + 8
        if kind == "trans":
            return t0 + 8, t0 + 8, t0 + 8
        if kind in VALU:
            return t0 + 4, t0 + 4, t0 + 4
        if kind in ("dsr", "dma", "vld"):
            return t0 + 8, t0 + 5, max(vb, t0 + 8)
        if kind in ("dsw", "vst"):
            d = {4: 12, 8: 16, 12: 28, 16: 40}[size] if kind == "dsw" else {4: 12, 8: 16, 12: 20, 16: 24}[size]
            return t0 + d, t0 + d - 4, max(vb, t0 + d)
        return t0 + 4, t0 + 4, vb

    def _emit(self, text, kind, size=0, ws=1):
        t0 = self.t_issue(kind)
        self.t, self.tmem, self.vb = self.after(kind, size, t0)
        if kind == "mfma":
            self.mf = t0 + 16
            self.nmf += 1
        if ws > 1:
            self.t += 4 * (ws - 1)
        self.last = kind
        self.W += ws
        self.lines.append("    " + text)
        self.stats[kind] = self.stats.get(kind, 0) + 1
        return t0

    def raw(self, text):
        self.lines.append(text)

    def wait(self, lg=None, vm=None):
        parts = []
        tt = 0
        if vm is not None:
            vm = min(vm, 63)
            k = len(self.vmq) - vm
            for o in self.vmq[:k]:
                o.done = True
                tt = max(tt, o.tc)
            self.vmq = self.vmq[k:]
            parts.append(f"vmcnt({vm})")
        if lg is not None:
            lg = min(lg, 15)
            k = len(self.lgq) - lg
            for o in self.lgq[:k]:
                o.done = True
                tt = max(tt, o.tc)
            self.lgq = self.lgq[k:]
            parts.append(f"lgkmcnt({lg})")
        self._emit("s_waitcnt " + " ".join(parts), "wait")
        if tt > self.t:
            self.stats["stall"] = self.stats.get("stall", 0) + tt - self.t
            self.t = tt

    def issue(self, op):
        t0 = self._emit(op.text, op.kind, op.size)
        op.t, op.w = t0, self.W
        if op.kind in DS:
            occ = (4 * len(op.wr) if op.kind == "dsr" else 3 * op.size)
            op.tc = self.lds_tc = max(t0 + self.LDS_LAT, self.lds_tc + occ)
            self.lgq.append(op)
        elif op.kind in VM:
            per = self.VM_PER if op.size >= 8 else 16
            self.vm_tc = max(t0 + (op.lat or self.VM_LAT), self.vm_tc + per)
            op.tc = self.vm_tc
            self.vmq.append(op)
            if op.size >= 8:
                self.ta.append(max(self.ta[-1], t0) + (op.gap or self.VM_GAP))
                self.vm_next = self.ta[-1 - self.TA_Q]
        if op.kind == "mfma" and self.nmf in self.mstamps:
            op.stamp = f"m{self.nmf}"
        if op.stamp is not None:
            self.smarks.append(t0)
        if op.kind == "bar" or op.stamp is not None:
            self.marks.append((op.tag, t0, self.nmf))

    def block(self, op):
        st = 0
        ws = []
        for p, (s, cy, wk) in op.preds.items():
            if s:
                st = max(st, s - (self.W - p.w))
            if wk and not p.done:
                ws.append((wk, p))
        return st, ws

    def vm_outstanding(self):
        return sum(1 for o in self.vmq if o.tc > self.t and o.size >= 8)

    def run(self, prog, stampfn=None):
        ops = prog.ops
        for o in ops:
            o.npred = len(o.preds)
        avail = [o for o in ops if o.npred == 0]
        left = len(ops)

        def retire(o):
            nonlocal left
            avail.remove(o)
            left -= 1
            for s in o.succs:
                s.npred -= 1
                if s.npred == 0:
                    avail.append(s)
            if stampfn and o.stamp is not None:
                stampfn(self, o)

        while left:
            avail.sort(key=lambda o: (o.rank, o.idx))
            ready, wblocked, sblocked = [], [], []
            for o in avail:
                st, ws = self.block(o)
                if ws:
                    wblocked.append((o, ws))
                elif st > 0:
                    sblocked.append((o, st))
                elif o.nb > self.t or (o.kind in VM and o.size >= 8 and
                                       (self.vm_outstanding() >= self.VM_MAX or self.vm_next > self.t + 4)):
                    continue
                else:
                    ready.append(o)
            mf = [o for o in ready if o.kind == "mfma"]
            fl = [o for o in ready if o.kind != "mfma"]
            lgn = vmn = None
            for o, ws in wblocked:
                if o.nb <= self.t and all(p.tc <= self.t for _, p in ws):
                    for wk, p in ws:
                        if wk == "lg":
                            lgn = 1
                        else:
                            vmn = max(vmn or 0, self.vmq.index(p) + 1)
            cw = None
            if lgn or vmn:
                lg = vm = None
                if lgn:
                    k = sum(1 for o in self.lgq if o.tc <= self.t)
                    lg = len(self.lgq) - k
                    if lg > 15:
                        lg = None
                if vmn:
                    vm = len(self.vmq) - vmn
                if lg is not None or vm is not None:
                    cw = (lg, vm)
            mf_soon = bool(mf) or any(o.kind == "mfma" for o, _ in sblocked) or \
                any(o.kind == "mfma" and all(p.tc <= self.mf for _, p in ws) for o, ws in wblocked)
            if mf and max(self.t, self.vb) >= self.mf:
                self.issue(mf[0])
                retire(mf[0])
                continue

            def fits(kind, size):
                t0 = self.t_issue(kind)
                t, _, vb = self.after(kind, size, t0)
                return max(t, vb) <= self.mf

            free_slot = self.t < self.vb
            pick = None
            if mf_soon:
                need_wait_for_mfma = cw and not mf
                if free_slot or need_wait_for_mfma:
                    if need_wait_for_mfma:
                        self.wait(*cw)
                        continue
                    valu_ready = [o for o in fl if o.kind in VALU]
                    for o in fl:
                        if o.kind in MEM and (fits(o.kind, o.size) or (o.kind in ("dsw", "vst") and self.last == "mfma")):
                            pick = o
                            break
                    if pick is None:
                        for o in fl:
                            if o.kind in ("salu", "bar"):
                                pick = o
                                break
                    if pick is None and cw:
                        self.wait(*cw)
                        continue
                if pick is None:
                    vs = [o for o in fl if o.kind in VALU and fits(o.kind, o.size)]
                    if vs:
                        pick = vs[0]
                        tr = [o for o in vs if o.kind == "trans"]
                        if pick.kind != "trans" and tr and pick.rank >= 0:
                            plain = [o for o in vs if o.kind != "trans"]
                            chain = any(s_.npred == 1 and s_.kind == "valu" and s_.preds[pick][0] == 0 for s_ in pick.succs)
                            if len(plain) < 2 and not chain:
                                pick = tr[0]
                if pick is None:
                    for o in fl:
                        if o.kind not in VALU and fits(o.kind, o.size):
                            pick = o
                            break
                if pick is None and cw and fits("wait", 0):
                    self.wait(*cw)
                    continue
                if pick is None and mf:
                    pick = mf[0]
            if pick is None:
                if cw and (free_slot or not fl):
                    self.wait(*cw)
                    continue
                if fl:
                    pick = fl[0]
                    if free_slot:
                        for o in fl:
                            if o.kind not in VALU:
                                pick = o
                                break
            if pick is not None:
                self.issue(pick)
                retire(pick)
                continue
            if sblocked:
                n = min(st for _, st in sblocked)
                self._emit(f"s_nop {n - 1}", "nop", ws=n)
                self.stats["nopws"] = self.stats.get("nopws", 0) + n
                continue
            cands = []
            for o, ws in wblocked:
                cands.append(max(p.tc for _, p in ws))
            for o in avail:
                if o.nb > self.t:
                    cands.append(o.nb)
            for o in self.vmq:
                if o.tc > self.t:
                    cands.append(o.tc)
                    break
            cands.append(self.vm_next - 4)
            cands = [c for c in cands if c > self.t]
            if cands:
                nt = min(cands)
                self.stats["stall"] = self.stats.get("stall", 0) + nt - self.t
                self.t = nt
            else:
                self.wait(lg=15)

    def settle(self):
        self.wait(lg=0, vm=None)
        self._emit("s_nop 7", "nop", ws=8)

    def text(self):
        return "\n".join(self.lines) + "\n"
```

```python
import math
import os
import struct
import sys

sys.path.insert(0, os.path.dirname(os.path.abspath(__file__)))
from sched import Op, Prog, Sched, V, A, rs

NAME = "standalone__neighborhood_dinat__vision"
PROF = os.environ.get("PROF")
STFLAG = os.environ.get("STFLAG", "")
FORCE_SAFE = os.environ.get("FORCE_SAFE")
ST_GAP = int(os.environ.get("ST_GAP", 72))
X_LAT = int(os.environ.get("X_LAT", 800))

ROW = 7680
STG = 92160
STGW = 12288
NPIECE = 4
SP = 122880
SLOT = 6144
OP = 384
MID = 30720
DUMMY = 142848
FLAG = 143360
NEGB = 145344
EB = NEGB + 512
ERP = 448
EHS = 4480
LDS_TOTAL = 163840

VB = 0
KB = 90
NK = 13
QB = 168
PB = 180
SB = 196
NS = 4
OB = 212
ACCB = 228
NACC = 3
KX = (240, 241)
QX = (242, 243)
EA = (244, 245, 246)
OW, MX, SWA, ST0, ST1 = 247, 248, 249, 250, 251
RB0, RB1, TP0, TP1 = 252, 253, 254, 255
TA0, TA1 = OB + 13, OB + 14
OR = QX
OW2 = ST1
WT = (SWA, ST0)
XD = (168, 169, 170, 171)
WD = (172, 173, 174)
WT2 = (175, 176)
BOUNCE = (24, 54, 84)
WDO = (28, 29, 58)
WSA = 89
WK, WV, WQ = 0, 72, 144
XR = 216
NXR = 8
ONES = 248
STASH = 252

SX, SW, SWO, SRPB, SOUT, SWS = 4, 8, 12, 16, 20, 24
S_W, S_STG, S_RP, S_CP, S_ORG, S_BR, S_BC, S_FR, S_FC, S_EH, S_C, S_96 = [f"s{i}" for i in range(28, 40)]
S_XB = [f"s{i}" for i in range(40, 45)]
S_XG = "s45"
S_XL = "s46"
S_BAD = "s47"
S_RB = "s48"
S_RS = "s49"
S_C2 = "s3"


def f32bits(x):
    return struct.unpack("<I", struct.pack("<f", x))[0]


NEG = f32bits(-1e30)
LOG2E = math.log2(math.e)


def isreg(x):
    return isinstance(x, str) and (x in ("vcc", "m0", "scc") or (x[0] in "vas" and x[1:].isdigit()))


def fmt(x):
    if isinstance(x, int):
        return str(x) if -16 <= x <= 64 else hex(x & 0xFFFFFFFF)
    return x


class G:
    def __init__(self):
        self.p = Prog()
        self.rank = 1
        self.tag = ""
        self.st = 0

    def add(self, text, kind, rd=(), wr=(), **kw):
        kw.setdefault("rank", self.rank)
        return self.p.add(Op(text, kind, rd, wr, tag=self.tag, **kw))

    def valu(self, op, d, *src, kind="valu", **kw):
        d = f"v{d}" if isinstance(d, int) else d
        rd = [s for s in src if isreg(s)]
        return self.add(f"{op} {d}, " + ", ".join(fmt(s) for s in src), kind, rd, [d], **kw)

    def cmp(self, op, a, b):
        return self.add(f"{op} vcc, {fmt(a)}, {fmt(b)}", "valu", [s for s in (a, b) if isreg(s)], ["vcc"])

    def cnd(self, d, f, t):
        return self.add(f"v_cndmask_b32 v{d}, {fmt(f)}, {fmt(t)}, vcc", "valu",
                        [s for s in (f, t) if isreg(s)] + ["vcc"], [f"v{d}"])

    def cndk(self, d, k, t):
        self.valu("v_add_u32", d, -k, t)
        self.cnd(d, 0, f"v{d}")
        self.valu("v_add_u32", d, k, f"v{d}")

    def salu(self, op, d, *src, **kw):
        rd = [s for s in src if isreg(s)]
        wr = [d] if d else []
        return self.add(f"{op} " + ", ".join(fmt(s) for s in ([d] if d else []) + list(src)), "salu", rd, wr, **kw)

    def stmp(self):
        self.st = (self.st + 1) % 10
        return f"s{50 + self.st}"

    def mfma(self, d, a, b, c, **kw):
        op = "v_mfma_f32_16x16x32_bf16" if len(a) == 4 else "v_mfma_f32_16x16x16_bf16"
        rd = list(a) + list(b) + (list(c) if c else [])
        return self.add(f"{op} {rs(d)}, {rs(a)}, {rs(b)}, {rs(c) if c else '0'}", "mfma", rd, d,
                        srcc=tuple(c) if c else None, mop=op, **kw)

    def dsr(self, op, d, addr, off, lds, **kw):
        assert 0 <= off < 65536, off
        return self.add(f"{op} {rs(d)}, v{addr} offset:{off}", "dsr", [f"v{addr}"], d, lds=lds, **kw)

    def dsw(self, op, addr, src, off, lds, **kw):
        assert 0 <= off < 65536, off
        return self.add(f"{op} v{addr}, {rs(src)} offset:{off}", "dsw", [f"v{addr}"] + list(src), [], lds=lds,
                        size=4 * len(src), **kw)

    def srd(self, s):
        return [f"s{s + i}" for i in range(4)]

    def dma(self, voff, srd, soff, lds, **kw):
        return self.add(f"buffer_load_dwordx4 v{voff}, s[{srd}:{srd + 3}], {soff} offen lds", "dma",
                        [f"v{voff}", "m0"] + self.srd(srd) + ([soff] if isreg(soff) else []), [], lds=lds, size=16, **kw)

    def vld(self, op, d, voff, srd, soff, off=0, size=16, **kw):
        o = f" offset:{off}" if off else ""
        return self.add(f"{op} {rs(d)}, v{voff}, s[{srd}:{srd + 3}], {soff} offen{o}", "vld",
                        [f"v{voff}"] + self.srd(srd) + ([soff] if isreg(soff) else []), d, size=size, **kw)

    def vst(self, op, src, voff, srd, soff, off=0, flags="", **kw):
        o = f" offset:{off}" if off else ""
        return self.add(f"{op} {rs(src)}, v{voff}, s[{srd}:{srd + 3}], {soff} offen{o}{flags}", "vst",
                        [f"v{voff}"] + list(src) + self.srd(srd) + ([soff] if isreg(soff) else []), [],
                        size=4 * len(src), **kw)

    def bar(self, name):
        o = self.add("s_barrier", "bar", rank=0)
        o.tag = name
        o.stamp = name
        return o

    def lane(self, d):
        self.valu("v_mbcnt_lo_u32_b32", d, -1, 0)
        self.valu("v_mbcnt_hi_u32_b32", d, -1, f"v{d}")


def v(i):
    return f"v{i}"


def xrow(r):
    return (r & 15) * ROW


def xrange_(r0, r1):
    return [(xrow(r), xrow(r) + ROW, "r", None, 0, 0) for r in range(r0, r1 + 1)]


def wdma_offsets(g, dst, pitch, lane, t0, t1, t2, wo=False):
    for j in range(3):
        g.valu("v_add_u32", t0, 64 * j, v(lane))
        g.valu("v_mul_u32_u24", t1, 10923, v(t0))
        g.valu("v_lshrrev_b32", t1, 16, v(t1))
        g.valu("v_mul_u32_u24", t2, 6, v(t1))
        g.valu("v_sub_u32", t0, v(t0), v(t2))
        g.valu("v_lshrrev_b32", t2, 1, v(t1))
        g.valu("v_and_b32", t2, 4, v(t2))
        g.valu("v_xor_b32", t1, v(t1), v(t2))
        if wo:
            g.valu("v_bfe_u32", t2, v(t1), 2, 1)
            g.valu("v_mul_u32_u24", dst[j], 96, v(t2))
            g.valu("v_lshrrev_b32", t2, 3, v(t1))
            g.valu("v_lshl_add_u32", dst[j], v(t2), 2, v(dst[j]))
            g.valu("v_and_or_b32", t1, v(t1), 3, v(dst[j]))
            g.valu("v_lshrrev_b32", t2, 1, v(t0))
            g.valu("v_and_b32", t0, 1, v(t0))
            g.valu("v_lshl_add_u32", t0, v(t2), 3, v(t0))
        g.valu("v_mul_u32_u24", t1, pitch, v(t1))
        g.valu("v_lshl_add_u32", dst[j], v(t0), 4, v(t1))


def consts_early(g):
    g.lane(1)
    g.salu("s_lshl_b32", "s50", S_W, 1)
    g.salu("s_mul_i32", "s51", S_FC, 7)
    for j, g0 in enumerate((0, 64, 128, 32)):
        g.valu("v_add_u32", 2, g0, "v1")
        g.valu("v_mul_u32_u24", 3, 2731, "v2")
        g.valu("v_lshrrev_b32", 3, 16, "v3")
        g.valu("v_mul_u32_u24", 4, 24, "v3")
        g.valu("v_sub_u32", 2, "v2", "v4")
        g.valu("v_bfe_u32", 4, "v3", 1, 1)
        g.valu("v_or_b32", 4, "s50", "v4")
        g.valu("v_xor_b32", 2, "v2", "v4")
        g.valu("v_xor_b32", 3, "s51", "v3")
        g.valu("v_mul_u32_u24", 3, 768, "v3")
        g.valu("v_lshl_add_u32", XD[j], "v2", 4, "v3")
        if j < 3:
            g.valu("v_add_u32", 5 + j, S_XB[0], v(XD[j]))
            g.valu("v_max_i32", 5 + j, 0, v(5 + j))
    wdma_offsets(g, WD, 1152, 1, 2, 3, 4)


def body(safe):
    g = G()
    R_EPI, R_A, R_H, R_BG = -1, 1, 1, 2

    def xdma(T, stash=False):
        for _ in xdma_g(T, stash):
            pass

    def xdma_g(T, stash=False):
        lo = xrow(4 * T)
        for j in range(8):
            if T == 2 and j == 0:
                w_read_upto(6)
            g.tag = f"xdma{T}"
            g.rank = R_H if stash else 0
            k, rj = (j // 3, j % 3) if j < 7 else (2, 3)
            so = S_XB[T]
            if k:
                so = g.stmp()
                if k == 1:
                    g.salu("s_add_u32", so, S_XB[T], S_XG)
                else:
                    g.salu("s_lshl1_add_u32", so, S_XG, S_XB[T])
            reg = XD[rj]
            if stash:
                reg = (TP0, TP1)[j & 1]
                g.valu("v_accvgpr_read_b32", reg, f"a{STASH + rj}")
            elif T == 0 and k == 0:
                reg = 5 + rj
                so = "0"
            g.salu("s_add_u32", "m0", S_XL, lo + (1024 * j if j < 7 else 6656))
            u = 10000 * T + 1024 * j
            o = g.dma(reg, SX, so, [(lo, lo + 4 * ROW, "w", "xd", u, u + 1024)])
            o.lat = X_LAT
            yield o

    pc = [0]

    def wdma_g():
        for n, (mat, p) in enumerate(wseq):
            extra = mat == 1 and p >= 4
            if extra:
                sl = -(p - 3)
            else:
                sl = pc[0] % NPIECE
                pc[0] += 1
                if sl in occ:
                    w_read_upto(occ[sl] + 1)
                occ[sl] = n
            wslots[(mat, p)] = sl
            if mat == 3 and p == 0:
                wo_consts()
            so = f"s{60 + n % 4}"
            for j in range(3):
                g.tag = f"wdma{mat}.{p}"
                g.rank = 0
                if j == 0:
                    if mat < 3:
                        g.salu("s_add_u32", so, S_96, p * 32 * 1152 + 384 * mat)
                    else:
                        g.salu("s_lshl_b32", so, S_W, 5)
                        g.salu("s_add_u32", so, so, (48 * (p & 1) + 16 * (p >> 1)) * 384)
                if extra:
                    o = (p - 4) * 3072 + 1024 * j
                    g.salu("s_add_u32", "m0", S_XL, 8 * ROW + o)
                    lds = [(8 * ROW, 12 * ROW, "w", "xd", 20000 + o, 20000 + o + 1024)]
                else:
                    g.salu("s_add_u32", "m0", S_STG, sl * 3072 + 1024 * j)
                    lds = [(STG, STG + 4 * STGW, "w", "stg", sl * 3072 + 1024 * j, sl * 3072 + 1024 * j + 1024)]
                yield g.dma((WD if mat < 3 else WDO)[j], SW if mat < 3 else SWO, so, lds)

    occ = {}
    bc = [0]

    def wpiece_read(mat, p, sl):
        g.tag = f"wrd{mat}.{p}"
        g.rank = 0 if mat < 3 else R_BG
        lds = [(STG, STG + 4 * STGW, "r", "stg", sl * 3072, sl * 3072 + 3072)]
        wt = WT
        if sl < 0:
            sl = -sl - 1
            lds = [(8 * ROW, 12 * ROW, "r", "xd", 20000 + sl * 3072, 20000 + sl * 3072 + 3072)]
            wt = WT2
        for ct in range(3):
            f = ct * 6 + p
            if mat < 3:
                d = A({0: WQ, 1: WK, 2: WV}[mat] + 4 * f, 4)
                for half in range(2):
                    g.dsr("ds_read_b64_tr_b16", d[2 * half:2 * half + 2], wt[half], sl * 3072 + ct * 32, lds)
            else:
                d = V(BOUNCE[bc[0] % 3], 4)
                bc[0] += 1
                for half in range(2):
                    g.dsr("ds_read_b64_tr_b16", d[2 * half:2 * half + 2], WT[half], sl * 3072 + ct * 32, lds)
                so = g.stmp()
                g.salu("s_mov_b32", so, f * 1024)
                o = g.vst("buffer_store_dwordx4", d, WSA, SWS, so)
                o.wr.add(f"ws{f}")

    wseq = [(m, p) for m in (1, 2, 0, 3) for p in range(6)]
    wslots = {}
    wi = [0]

    def w_read_upto(n):
        while wi[0] < n:
            m, p = wseq[wi[0]]
            wpiece_read(m, p, wslots[(m, p)])
            wi[0] += 1

    def wo_consts():
        g.tag = "woc"
        g.rank = R_BG
        b = BOUNCE[0]
        g.lane(b)
        wdma_offsets(g, WDO, 384, b, b + 1, b + 2, b + 3, wo=True)
        g.salu("s_mul_i32", "s66", S_W, 18432)
        g.valu("v_lshl_add_u32", WSA, v(b), 4, "s66")

    def xall():
        for T in range(3):
            yield from xdma_g(T)

    xg, wg = xall(), wdma_g()

    def prefetch():
        g.tag = "pf"
        g.rank = 0
        if safe:
            return
        g.valu("v_lshl_add_u32", 8, S_W, 6, "v1")
        g.valu("v_lshlrev_b32", 9, 5, "v8")
        g.salu("s_lshr_b32", "s66", "s2", 3)
        g.salu("s_mul_i32", "s67", "s66", 6912)
        g.vld("buffer_load_dword", V(10), 9, SW, "s67", size=8).rd.add("m0")
        g.valu("v_lshlrev_b32", 11, 4, "v8")
        g.salu("s_mul_i32", "s67", "s66", 2304)
        o = g.vld("buffer_load_dword", V(10), 11, SWO, "s67", size=8)
        o.wr = set()
        o.rd.add("m0")

    def rpb_dma():
        g.tag = "rpb"
        g.rank = 0
        g.valu("v_lshlrev_b32", 12, 4, "v1")
        g.salu("s_and_b32", "s65", S_RB, 0xFFF0)
        g.salu("s_add_u32", "m0", S_EH, EHS - 1024)
        g.dma(12, SRPB, "s65", [(EB, LDS_TOTAL, "w", "ew", 7, 10)])

    def plan(pat):
        for ch in pat:
            if ch == "x":
                o = next(xg)
            elif ch == "w":
                o = next(wg)
            elif ch == "p":
                prefetch()
            elif ch == "r":
                rpb_dma()

    PLAN = os.environ.get("PLAN", "xxxxxxxxwww|xwwxwwxwwxwwxwwxwwxwwxwrxwwxwwxwwxwwxwwxwwxwwx")
    n0 = len(g.p.ops)
    plan(PLAN.split("|")[0])
    for o in g.p.ops[n0:]:
        o.gap = 4

    g.tag = "consts"
    g.rank = 0
    L15, GG, QR, QC = 13, 14, 15, 16
    g.valu("v_and_b32", L15, 15, "v1")
    g.valu("v_lshrrev_b32", GG, 4, "v1")
    g.valu("v_lshrrev_b32", QR, 2, v(L15))
    g.valu("v_and_b32", QC, 3, v(L15))
    g.valu("v_and_b32", 17, 1, v(GG))
    g.valu("v_lshl_add_u32", 18, v(GG), 3, v(QR))
    for half in range(2):
        g.valu("v_xor_b32", 19, half, "v17")
        g.valu("v_lshl_add_u32", 19, "v19", 2, "v18")
        g.valu("v_mul_u32_u24", 19, 96, "v19")
        g.valu("v_lshl_add_u32", 19, v(QC), 3, "v19")
        g.valu("v_add_u32", WT[half], S_STG, "v19")
        g.valu("v_add_u32", 19, S_XL, "v19")
        g.valu("v_add_u32", WT2[half], 8 * ROW, "v19")

    def xaddr(dst, r, c, gg, t):
        g.valu("v_and_b32", t, 3, v(r))
        g.valu("v_mul_u32_u24", r, ROW, v(r))
        g.valu("v_lshlrev_b32", t, 1, v(t))
        g.valu("v_bfe_u32", dst[1], v(c), 1, 1)
        g.valu("v_or_b32", t, v(t), v(dst[1]))
        g.valu("v_xor_b32", t, v(t), v(gg))
        g.valu("v_lshl_add_u32", r, v(t), 4, v(r))
        g.valu("v_mul_u32_u24", t, 384, v(c))
        g.valu("v_add_u32", dst[0], v(r), v(t))
        g.valu("v_xor_b32", dst[1], 64, v(dst[0]))

    g.valu("v_mov_b32", 17, v(QR))
    xaddr(KX, 17, QC, GG, 18)
    g.rank = R_BG
    g.valu("v_add_u32", 17, 3, v(QR))
    g.valu("v_add_u32", 19, 3, v(QC))
    xaddr(QX, 17, 19, GG, 18)
    for j in range(4):
        g.valu("v_accvgpr_write_b32", f"a{STASH + j}", v(XD[j]))
    g.valu("v_mov_b32", 17, 0x3F803F80)
    for j in range(4):
        g.valu("v_accvgpr_write_b32", f"a{ONES + j}", "v17")
    g.valu("v_mov_b32", MX, 0)
    g.salu("s_and_b32", "s66", S_W, 1)
    g.salu("s_lshl_b32", "s66", "s66", 2)
    g.salu("s_lshr_b32", "s67", S_W, 1)
    g.salu("s_lshl_b32", "s67", "s67", 3)
    g.valu("v_lshrrev_b32", 18, 1, v(L15))
    g.valu("v_xor_b32", 18, v(GG), "v18")
    g.valu("v_xor_b32", 18, "s66", "v18")
    g.valu("v_mul_u32_u24", 17, OP, v(L15))
    g.valu("v_lshl_add_u32", 17, "v18", 4, "v17")
    g.valu("v_add_u32", 17, "s67", "v17")
    g.valu("v_add_u32", OW, MID, "v17")
    g.valu("v_add_u32", OW2, SP, "v17")

    def ea_generic(first, qr, qc, gg, t0, t1):
        g.valu("v_sub_u32", t0, v(gg), v(qr))
        g.valu("v_mul_i32_i24", t0, ERP, v(t0))
        g.valu("v_lshlrev_b32", t1, 4, v(qc))
        g.valu("v_sub_u32", t0, v(t0), v(t1))
        g.valu("v_add_u32", t0, S_EH, v(t0))
        if first:
            g.valu("v_max_u32", t1, S_BR, v(qr))
            g.valu("v_sub_u32", t1, v(gg), v(t1))
        else:
            g.valu("v_sub_u32", t1, v(gg), v(qr))
        for rel in range(3):
            g.valu("v_add_u32", EA[rel], 4 * rel, v(t1))
            g.cmp("v_cmp_gt_u32", 7, v(EA[rel]))
            g.valu("v_add_u32", EA[rel], 48 + 4 * rel * ERP - NEGB, v(t0))
            g.cnd(EA[rel], 0, v(EA[rel]))
            g.valu("v_add_u32", EA[rel], NEGB, v(EA[rel]))

    ea_generic(True, QR, QC, GG, 17, 18)

    g.tag = "etab"
    g.rank = R_BG
    EV, EVO, EM, EAD, EW = 30, (50, 51), (52, 53), (60, 61), 62
    g.valu("v_min_u32", 20, 55, "v1")
    g.valu("v_lshlrev_b32", EW, 3, "v20")
    g.salu("s_mul_i32", "s64", S_FR, 9 * ERP)
    g.salu("s_add_u32", "s64", "s64", S_EH)
    g.valu("v_add_u32", EW, "s64", v(EW))
    g.valu("v_lshrrev_b32", 21, 1, "v20")
    g.valu("v_and_b32", 20, 1, "v20")
    g.valu("v_lshlrev_b32", 20, 1, "v20")
    g.valu("v_add_u32", 22, -12, "v21")
    g.cmp("v_cmp_lt_u32", 11, "v21")
    g.cnd(22, "v21", "v22")
    g.valu("v_mov_b32", 23, S_BC)
    g.cnd(23, 0, "v23")
    g.salu("s_lshl_b32", "s66", S_FC, 1)
    g.salu("s_sub_u32", "s66", 1, "s66")
    for jj in range(2):
        g.valu("v_add_u32", 63, jj, "v20")
        g.valu("v_add3_u32", 64, "v22", "v63", -6)
        g.valu("v_add_u32", 65, 3, "v64")
        g.valu("v_and_b32", 66, 12, "v22")
        g.valu("v_add3_u32", 66, "v66", "v63", -3)
        g.cmp("v_cmp_ne_u32", 0, "v23")
        g.cnd(65, "v65", "v66")
        g.cmp("v_cmp_gt_u32", 7, "v65")
        g.valu("v_mul_i32_i24", 64, "s66", "v64")
        g.valu("v_add_lshl_u32", 64, "v64", 6, 1)
        g.cnd(EVO[jj], 0, "v64")
        g.valu("v_mov_b32", 64, f32bits(LOG2E))
        g.cnd(EM[jj], 0, "v64")
        g.valu("v_mov_b32", 64, 0)
        g.valu("v_mov_b32", 65, NEG)
        g.cnd(EAD[jj], "v65", "v64")
    plan(PLAN.split("|")[1])
    for o in xg:
        pass
    for o in wg:
        pass
    w_read_upto(len(wseq))
    g.tag = "etab"
    g.rank = R_BG
    g.salu("s_and_b32", "s64", S_RB, 15)
    g.salu("s_add_u32", "s64", "s64", S_EH)
    for jj in range(2):
        g.valu("v_add_u32", EVO[jj], "s64", v(EVO[jj]))
    for i in range(10):
        for jj in range(2):
            g.dsr("ds_read_u16", V(EV + 2 * i + jj), EVO[jj], EHS - 1024 + 26 * i, [(EB, LDS_TOTAL, "r", "ew", 7, 10)],
                  nb=int(os.environ.get("E_NB", 4000)))
    for i in range(10):
        for jj in range(2):
            r = EV + 2 * i + jj
            g.valu("v_lshlrev_b32", r, 16, v(r))
            g.valu("v_fma_f32", r, v(r), v(EM[jj]), v(EAD[jj]))
        g.dsw("ds_write_b64", EW, V(EV + 2 * i, 2), 0, [(EB, LDS_TOTAL, "w", "ew", 0, 10)])
        g.valu("v_add_u32", EW, S_RS, v(EW))
    g.valu("v_mov_b32", 64, NEG)
    g.valu("v_mov_b32", 65, NEG)
    g.valu("v_lshlrev_b32", 63, 3, "v1")
    g.valu("v_add_u32", 63, NEGB, "v63")
    g.dsw("ds_write_b64", 63, V(64, 2), 0, [(NEGB, EB, "w", "ew", 20, 21)])
    ELDS = [(NEGB, LDS_TOTAL, "r", "ew", 0, 100)]
    ELDSX = [(NEGB, LDS_TOTAL, "r", None, 0, 0)]

    xp = [0]
    ap = [0]
    base = {KX: 0, QX: 0}

    def rebase(regs, off, span=320):
        b = base[regs]
        if not (b <= off and off + span - b < 65536):
            nb = (off // 30720) * 30720
            g.rank = R_EPI
            for r in regs:
                g.valu("v_add_u32", r, nb - b, v(r))
            base[regs] = b = nb
        return off - b

    def xfrag(addr, off, lds):
        d = A(XR + 4 * (xp[0] % NXR), 4)
        xp[0] += 1
        g.dsr("ds_read_b128", d, addr, off, lds, rank=R_EPI)
        return d

    def xfrags(pair, off, lds):
        return [xfrag(pair[ks & 1], off + (ks >> 1) * 128, lds) for ks in range(6)]

    def acc():
        d = V(ACCB + 4 * (ap[0] % NACC), 4)
        ap[0] += 1
        return d

    def wf(wb, ct, ks):
        return A(wb + 4 * (ct * 6 + ks), 4)

    kslot = {}
    kfree = list(range(NK))

    def cvt(d, a, b, rank=R_EPI):
        g.valu("v_cvt_pk_bf16_f32", d, a, b, rank=rank)

    def k_epi(r, c, ct, ac):
        kb = KB + 6 * kslot[(r, c)] + 2 * ct
        cvt(kb, ac[0], ac[1])
        cvt(kb + 1, ac[2], ac[3])

    def v_epi(r, c, ct, ac):
        for m in range(2):
            cvt(VB + 30 * ct + (2 * c + m) * 3 + r % 3, ac[2 * m], ac[2 * m + 1])

    def mm(kind, ac, ct, ks, xf):
        c = ac if ks else None
        if kind == "K":
            g.mfma(ac, wf(WK, ct, ks), xf, c, rank=1)
        elif kind == "V":
            g.mfma(ac, xf, wf(WV, ct, ks), c, rank=1)
        else:
            g.mfma(ac, wf(WQ, ct, ks), xf, c, rank=1)

    def kv_tile(r, c, kinds="KV"):
        g.tag = f"{kinds}{r}{c}"
        off = rebase(KX, xrow(4 * r) + 1536 * c)
        xf = xfrags(KX, off, xrange_(4 * r, 4 * r + 3))
        if "K" in kinds:
            kslot[(r, c)] = kfree.pop(0)
        for kind in kinds:
            for ct in range(3):
                ac = acc()
                for ks in range(6):
                    mm(kind, ac, ct, ks, xf[ks])
                (k_epi if kind == "K" else v_epi)(r, c, ct, ac)

    ga = [0]

    def group(kind, tiles):
        g.tag = f"g{kind}{tiles[0][0]}{tiles[0][1]}"
        accs = {}
        for t in tiles:
            if kind == "K":
                kslot[t] = kfree.pop(0)
            for ct in range(3):
                accs[t + (ct,)] = V(PB + 4 * (ga[0] % 12), 4)
                ga[0] += 1
        for ks in range(6):
            for (r, c) in tiles:
                off = rebase(KX, xrow(4 * r) + 1536 * c)
                xf = xfrag(KX[ks & 1], off + (ks >> 1) * 128, xrange_(4 * r, 4 * r + 3))
                for ct in range(3):
                    mm(kind, accs[(r, c, ct)], ct, ks, xf)
        for (r, c) in tiles:
            for ct in range(3):
                (k_epi if kind == "K" else v_epi)(r, c, ct, accs[(r, c, ct)])

    slots = {"00": SP, "01": SP + SLOT, "02": SP + 2 * SLOT}
    for k, n in enumerate(("s01", "10", "11", "12", "20", "21", "22", "s2", "b1", "b2")):
        slots[n] = MID + k * SLOT

    def oc(n, rw):
        return [(slots[n], slots[n] + SLOT, rw, "oc", slots[n], slots[n] + SLOT)]

    def ow(n):
        return (OW2, slots[n] - SP) if slots[n] >= SP else (OW, slots[n] - MID)

    qreg = {}
    qp = [0]

    def qalloc(n):
        qreg[n] = QB + 6 * (qp[0] % 2)
        qp[0] += 1
        return qreg[n]

    def lanebits(t):
        g.lane(t)

    def q_xf(n):
        g.rank = R_H
        if n[0] in "012":
            b, j = int(n[0]), int(n[1])
            off = rebase(QX, b * 4 * ROW + j * 1536)
            return xfrags(QX, off, xrange_(3 + 4 * b, 6 + 4 * b))
        if n == "s2":
            off = rebase(QX, 2 * 4 * ROW + 3 * 1536)
            return xfrags(QX, off, xrange_(11, 14))
        if n == "s01":
            off = rebase(QX, 3 * 1536, span=320)
            g.rank = R_H
            lanebits(TP0)
            g.valu("v_bfe_u32", TP0, v(TP0), 1, 1)
            g.valu("v_lshlrev_b32", TP1, 4, v(TP0))
            g.valu("v_xor_b32", TP1, v(TP1), v(QX[0]))
            g.valu("v_mul_u32_u24", TP0, 4 * ROW - 768, v(TP0))
            g.valu("v_add_u32", TP0, v(TP0), v(TP1))
            g.valu("v_xor_b32", TP1, 64, v(TP0))
            return xfrags((TP0, TP1), off, xrange_(3, 10))
        if n == "b1":
            t = acc()
            t = [int(x[1:]) for x in t]
            lanebits(t[0])
            g.valu("v_lshrrev_b32", t[1], 4, v(t[0]))
            g.valu("v_bfe_u32", t[2], v(t[0]), 2, 1)
            g.valu("v_add_u32", t[2], 15, v(t[2]))
            g.valu("v_and_b32", t[2], 15, v(t[2]))
            g.valu("v_bfe_u32", t[3], v(t[0]), 3, 1)
            g.valu("v_and_b32", t[0], 3, v(t[0]))
            g.valu("v_lshl_add_u32", t[0], v(t[3]), 2, v(t[0]))
            g.valu("v_add_u32", t[0], 3, v(t[0]))
            xaddr(QX, t[2], t[0], t[1], t[3])
            base[QX] = 0
        return xfrags(QX, 0 if n == "b1" else 8 * 384, xrange_(15, 16))

    pend = {}

    def q_reads(n):
        g.tag = f"Q{n}"
        pend[n] = q_xf(n)

    def q_blk(n, park=False, keep=True):
        g.tag = f"Q{n}"
        xf = pend.pop(n) if n in pend else q_xf(n)
        qb = qalloc(n) if keep else None
        for ct in range(3):
            ac = acc()
            for ks in range(6):
                mm("Q", ac, ct, ks, xf[ks])
            for i in range(4):
                g.valu("v_mul_f32", ac[i], S_C2 if ct == 1 else S_C, ac[i], rank=R_EPI)
            d = V(qb + 2 * ct, 2) if keep else ac[:2]
            cvt(d[0], ac[0], ac[1])
            cvt(d[1], ac[2], ac[3])
            if park:
                a, o = ow(n)
                g.dsw("ds_write_b64", a, d, o + 128 * ct, oc(n, "w"), rank=R_EPI)

    def wo_load():
        g.tag = "wo"
        g.rank = R_H
        lanebits(TP0)
        g.salu("s_mul_i32", "s66", S_W, 18432)
        g.valu("v_lshl_add_u32", TP0, v(TP0), 4, "s66")
        for f in range(18):
            so = g.stmp()
            g.salu("s_mov_b32", so, (f >> 2) * 4096)
            o = g.vld("buffer_load_dwordx4", A(WQ + 4 * f, 4), TP0, SWS, so, off=(f & 3) * 1024)
            o.rd.add(f"ws{f}")
        t = [int(x[1:]) for x in acc()]
        lanebits(t[0])
        g.valu("v_and_b32", t[1], 15, v(t[0]))
        g.valu("v_lshrrev_b32", t[0], 4, v(t[0]))
        g.valu("v_lshrrev_b32", t[2], 1, v(t[1]))
        g.valu("v_mul_u32_u24", t[3], OP, v(t[1]))
        g.valu("v_xor_b32", OR[1], v(t[0]), v(t[2]))
        g.valu("v_lshl_add_u32", OR[0], v(OR[1]), 4, v(t[3]))
        g.valu("v_xor_b32", OR[1], 64, v(OR[0]))
        base[OR] = 0
        g.salu("s_lshl_b32", "s66", S_W, 1)
        g.valu("v_lshrrev_b32", SWA, 1, v(t[0]))
        g.valu("v_or_b32", SWA, "s66", v(SWA))
        g.valu("v_mov_b32", RB1, v(SWA))
        g.valu("v_xor_b32", SWA, v(SWA), v(t[2]))
        g.valu("v_lshl_add_u32", SWA, v(SWA), 4, v(t[3]))
        g.valu("v_and_b32", t[3], 1, v(t[0]))
        g.valu("v_lshl_add_u32", SWA, v(t[3]), 3, v(SWA))
        base[(SWA,)] = 0
        g.salu("s_mul_i32", "s67", S_W, 4 * OP)
        g.valu("v_mul_u32_u24", t[0], OP, v(t[0]))
        g.valu("v_add_u32", t[0], "s67", v(t[0]))
        g.valu("v_lshlrev_b32", t[3], 3, v(t[3]))
        g.valu("v_xor_b32", RB0, v(t[1]), v(t[3]))
        g.valu("v_xor_b32", RB0, v(RB0), v(RB1))
        g.valu("v_lshl_add_u32", RB0, v(RB0), 4, v(t[0]))
        g.valu("v_xor_b32", RB1, v(RB1), v(t[2]))
        g.valu("v_lshl_add_u32", RB1, v(RB1), 4, v(t[0]))
        g.valu("v_and_b32", t[1], 1, v(t[1]))
        g.valu("v_lshl_add_u32", RB1, v(t[1]), 3, v(RB1))
        base[(RB0, RB1)] = 0

    stpos = [None]

    def st_addr(n):
        g.rank = R_H
        full = n[0] in "012"
        if full and stpos[0] is not None:
            b, j = int(n[0]), int(n[1])
            db, dj = b - stpos[0][0], j - stpos[0][1]
            s0, s1 = g.stmp(), g.stmp()
            g.salu("s_mul_i32", s0, S_RP, 4 * db)
            g.salu("s_mul_i32", s1, S_CP, 4 * dj)
            g.salu("s_add_u32", s0, s0, s1)
            g.valu("v_add_u32", ST0, s0, v(ST0))
            g.valu("v_add_u32", ST1, s0, v(ST1))
            stpos[0] = (b, j)
            return
        lanebits(TP0)
        s0, s1 = g.stmp(), g.stmp()
        g.valu("v_lshrrev_b32", TP1, 4, v(TP0))
        if full or n[0] == "s":
            r0, c0 = (3 + 4 * int(n[0]), 3 + 4 * int(n[1])) if full else ((3, 15) if n == "s01" else (11, 15))
            g.salu("s_add_u32", s0, S_W, r0)
            g.salu("s_mov_b32", s1, c0)
        else:
            g.salu("s_and_b32", s0, S_W, 1)
            g.salu("s_add_u32", s0, s0, 15)
            g.salu("s_lshr_b32", s1, S_W, 1)
            g.salu("s_lshl2_add_u32", s1, s1, 3 if n == "b1" else 11)
        if n in ("s2", "b2"):
            g.valu("v_add_u32", ST1, s1, v(TP1))
            g.cmp("v_cmp_gt_u32", 17, v(ST1))
        g.salu("s_mul_i32", s0, s0, S_RP)
        g.salu("s_mul_i32", s1, s1, S_CP)
        g.salu("s_add_u32", s0, s0, s1)
        g.salu("s_add_u32", s0, s0, S_ORG)
        if n == "s01":
            g.valu("v_and_b32", ST1, 2, v(TP1))
            g.valu("v_lshlrev_b32", ST1, 1, v(ST1))
            g.valu("v_mul_i32_i24", ST1, S_RP, v(ST1))
            g.valu("v_and_b32", ST0, 1, v(TP1))
            g.valu("v_mad_i32_i24", ST0, v(ST0), S_CP, v(ST1))
        else:
            g.valu("v_mul_i32_i24", ST0, S_CP, v(TP1))
        g.valu("v_add_u32", ST0, s0, v(ST0))
        if n in ("s2", "b2"):
            g.cndk(ST0, 0x80000000, v(ST0))
        g.valu("v_and_b32", TP0, 15, v(TP0))
        g.valu("v_lshl_add_u32", ST1, v(TP0), 3, v(ST0))
        g.valu("v_lshlrev_b32", TP1, 3, v(TP1))
        g.valu("v_and_b32", TP1, 8, v(TP1))
        g.valu("v_xor_b32", TP0, v(TP0), v(TP1))
        g.valu("v_lshl_add_u32", ST0, v(TP0), 4, v(ST0))
        stpos[0] = (int(n[0]), int(n[1])) if full else None

    staged = []

    def flush():
        for n in staged:
            g.tag = f"F{n}"
            st_addr(n)
            off = rebase((RB0, RB1), slots[n])
            lds = [(slots[n], slots[n] + SLOT, "r", None, 0, 0)]
            d0, d1 = A(STASH, 4), V(TP0, 2)
            g.dsr("ds_read_b128", d0, RB0, off, lds, rank=R_H)
            g.dsr("ds_read_b64", d1, RB1, off + 256, lds, rank=R_H)
            g.vst("buffer_store_dwordx4", d0, ST0, SOUT, "0", flags=STFLAG, rank=R_H)
            g.vst("buffer_store_dwordx2", d1, ST1, SOUT, "0", off=256, flags=STFLAG, rank=R_H)
        del staged[:]

    def o_blk(n):
        g.tag = f"O{n}"
        off = rebase(OR, slots[n])
        xf = xfrags(OR, off, [(slots[n], slots[n] + SLOT, "r", None, 0, 0)])
        g.bar(f"bO{n}")
        flush()
        g.tag = f"O{n}"
        off = rebase((SWA,), slots[n])
        for ct in range(3):
            ac = acc()
            for ks in range(6):
                mm("Q", ac, ct, ks, xf[ks])
            cvt(ac[0], ac[0], ac[1])
            cvt(ac[1], ac[2], ac[3])
            g.dsw("ds_write_b64", SWA, ac[:2], off + 128 * ct,
                  [(slots[n], slots[n] + SLOT, "w", "os", slots[n] + ct, slots[n] + ct + 1)], rank=R_EPI)
        staged.append(n)

    sp = [0]
    pq = [0]
    pzero = set()

    def attn(n):
        g.tag = f"A{n}"
        g.rank = R_A
        qn = "s01" if n in ("s0", "s1") else n
        mask = None
        if n[0] in "012":
            b, j = int(n[0]), int(n[1])
            rows, cols = (b, b + 1, b + 2), [(j, 2), (j + 1, 2), (j + 2, 1)]
            eoff = 192 if j == 0 else 0
            frees = [(b, j)]
        elif n[0] == "s":
            b, j = int(n[1]), 3
            rows, cols = (b, b + 1, b + 2), [(3, 2), (4, 2)]
            eoff = 32 if n == "s1" else 0
            mask = {"s0": 0, "s1": 1}.get(n)
            frees = [(b, 3), (b, 4)]
        else:
            b, j = 3, (0 if n == "b1" else 2)
            rows = (3, 4)
            cols = [(0, 2), (1, 2), (2, 2), (3, 1)] if n == "b1" else [(2, 2), (3, 2), (4, 2)]
            eoff = 0
            frees = []
        if n in ("10", "b1"):
            t = [SB + 4 * (sp[0] % NS) + i for i in range(4)] + [SB + 4 * ((sp[0] + 1) % NS) + i for i in range(4)]
            g.lane(t[4])
        if n == "10":
            g.valu("v_bfe_u32", t[0], v(t[4]), 2, 2)
            g.valu("v_and_b32", t[1], 3, v(t[4]))
            g.valu("v_lshrrev_b32", t[4], 4, v(t[4]))
            ea_generic(False, t[0], t[1], t[4], t[2], t[3])
        if n == "b1":
            g.valu("v_bfe_u32", t[0], v(t[4]), 2, 1)
            g.valu("v_lshrrev_b32", t[1], 1, v(t[4]))
            g.valu("v_and_b32", t[1], 4, v(t[1]))
            g.valu("v_and_or_b32", t[1], v(t[4]), 3, v(t[1]))
            g.valu("v_bfe_u32", t[5], v(t[4]), 3, 1)
            g.valu("v_lshrrev_b32", t[4], 4, v(t[4]))
            ea_generic(False, t[0], t[1], t[4], t[2], t[3])
            g.valu("v_xor_b32", t[5], 1, v(t[5]))
            g.valu("v_mul_u32_u24", EA[2], 192, v(t[5]))
            for rel in range(2):
                g.valu("v_add_u32", EA[rel], v(EA[rel]), v(EA[2]))
        if n == "b2":
            for rel in range(2):
                g.valu("v_sub_u32", EA[rel], v(EA[rel]), v(EA[2]))
        if qn not in qreg:
            qb = qalloc(qn)
            a, o = ow(qn)
            for ct in range(3):
                g.dsr("ds_read_b64", V(qb + 2 * ct, 2), a, o + 128 * ct, oc(qn, "r"), rank=0)
        qb = qreg.pop(qn)
        vbase = 6 * j
        tiles = [(r, c, nh) for (c, nh) in cols for r in rows]
        used = {(2 * c + m) * 3 + r % 3 - vbase for (r, c, nh) in tiles for m in range(nh)}
        nst = (max(used) >> 2) + 1

        def s_tile(r, c):
            s = V(SB + 4 * (sp[0] % NS), 4)
            sp[0] += 1
            g.dsr("ds_read_b128", s, EA[r - b], eoff + (c - j) * 64, ELDSX if n[0] == "b" else ELDS, rank=0)
            kb = KB + 6 * kslot[(r, c)]
            g.mfma(s, V(kb, 4), V(qb, 4), s, rank=0)
            g.mfma(s, V(kb + 2, 4), V(qb + 2, 4), s, rank=0)
            return s

        if safe:
            first = True
            for (r, c, nh) in tiles:
                s = s_tile(r, c)
                for m in range(nh):
                    if first:
                        g.valu("v_max_f32", MX, s[0], s[1])
                        first = False
                    else:
                        g.valu("v_max3_f32", MX, v(MX), s[2 * m], s[2 * m + 1])
            for which in (16, 32):
                g.valu("v_mov_b32", TA0, v(MX))
                g.add(f"v_permlane{which}_swap_b32 v{MX}, v{TA0}", "perm", [v(MX), v(TA0)], [v(MX), v(TA0)])
                g.valu("v_max_f32", MX, v(MX), v(TA0))

        def preg(idx):
            return PB + 4 * ((pq[0] + (idx >> 2)) % 4) + (idx & 3)

        written = set()
        step = 0
        for (r, c, nh) in tiles:
            s = s_tile(r, c)
            for i in range(2 * nh):
                if safe:
                    g.valu("v_sub_f32", s[i], s[i], v(MX))
                g.valu("v_exp_f32", s[i], s[i], kind="trans")
            for m in range(nh):
                idx = (2 * c + m) * 3 + r % 3 - vbase
                cvt(preg(idx), s[2 * m], s[2 * m + 1], rank=R_A)
                pzero.discard(preg(idx))
                written.add(idx)
            while step < nst and all((i in written) or (i not in used) for i in range(4 * step, 4 * step + 4)):
                for i in range(4 * step, 4 * step + 4):
                    if i not in used and preg(i) not in pzero:
                        g.valu("v_mov_b32", preg(i), 0)
                        pzero.add(preg(i))
                pr = V(preg(4 * step), 4)
                for td in range(3):
                    o = V(OB + 4 * td, 4)
                    g.mfma(o, V(VB + 30 * td + vbase + 4 * step, 4), pr, o if step else None, rank=0)
                o = V(OB + 12, 4)
                g.mfma(o, A(ONES, 4), pr, o if step else None, rank=0)
                step += 1
        assert step == nst
        pq[0] = (pq[0] + nst) % 4
        for t in frees:
            kfree.append(kslot.pop(t))
        g.rank = R_A
        g.valu("v_rcp_f32", TA0, v(OB + 12), kind="trans")
        if not safe:
            g.valu("v_max3_f32", MX, v(MX), v(OB + 12), v(TA0))
        a, off = ow(qn)
        if mask is not None:
            g.lane(TA1)
            g.valu("v_and_b32", TA1, 2, v(TA1))
            g.cmp("v_cmp_eq_u32", 2 * mask, v(TA1))
            g.cndk(TA1, DUMMY - off, v(a))
            a = TA1
        for td in range(3):
            o = V(OB + 4 * td, 4)
            for i in range(4):
                g.valu("v_mul_f32", o[i], o[i], v(TA0))
            cvt(o[0], o[0], o[1], rank=R_A)
            cvt(o[1], o[2], o[3], rank=R_A)
            g.dsw("ds_write_b64", a, o[:2], off + 128 * td, oc(qn, "w"))

    def flag_write():
        if safe:
            return
        g.tag = "flag"
        g.rank = 0
        g.valu("v_mov_b32", TA1, f32bits(2.0 ** 60))
        g.cmp("v_cmp_gt_f32", v(MX), v(TA1))
        g.add("s_cmp_lg_u64 vcc, 0\n    s_cselect_b32 s66, 1, 0", "salu", ["vcc"], ["s66"])
        g.valu("v_mov_b32", TA0, "s66")
        g.salu("s_lshl2_add_u32", "s67", S_W, FLAG)
        g.valu("v_mov_b32", TA1, "s67")
        g.dsw("ds_write_b32", TA1, V(TA0), 0, [(FLAG, FLAG + 16, "w", "fl", 0, 1)])

    def flag_read():
        if safe:
            return
        g.tag = "flagr"
        g.rank = R_BG
        g.valu("v_mov_b32", TA1, FLAG)
        s = V(SB, 4)
        g.dsr("ds_read_b128", s, TA1, 0, [(FLAG, FLAG + 16, "r", None, 0, 0)])
        g.valu("v_or3_b32", TA0, s[0], s[1], s[2])
        g.valu("v_or_b32", TA0, v(TA0), s[3])
        g.add(f"v_readfirstlane_b32 {S_BAD}, v{TA0}", "rfl", [v(TA0)], [S_BAD])

    for tk in os.environ.get("PHA", "b1 K0:0123 b2 K1:0 K1:1 K1:2 K1:3 V0:012 V1:0 V1:1 V1:2 b3 K2:0 K2:1 K2:2 K2:3 V2:0 V2:1 V2:2").split():
        if tk[0] == "b":
            g.bar(tk)
        else:
            group(tk[0], [(int(tk[1]), int(c)) for c in tk[3:]])
    order = os.environ.get("ORDER", """
        Q00 V03 V13 V23 K04 Q01 b4 A00 X3 V04 T14 Q02 A01 T24 Rs01 b5 Ks01 X4 A02 T30 Q10 P11 R12 b6 P12 As0
        T31 T32 P20 P21 A10 P22 Rs2 b7 Ps2 T33 Pb1 Pb2 WO A11 T34 O00 O01 A12 T40 O02 O10 As1 T41 T42 O11 A20 T43 O12 Os01
        A21 T44 O20 A22 O21 As2 O22 Ab1 Os2 Ab2 FW Ob1 FR Ob2 b12 FL""").split()
    for tk in order:
        c, n = tk[0], tk[1:]
        if tk == "WO":
            wo_load()
        elif tk == "FL":
            flush()
        elif tk == "FW":
            flag_write()
        elif tk == "FR":
            flag_read()
        elif tk == "Ks01":
            q_blk("s01", park=True, keep=True)
        elif c == "b":
            g.bar(tk)
        elif c == "X":
            xdma(int(n), stash=True)
        elif c == "Q":
            q_blk(n)
        elif c == "P":
            q_blk(n, park=True, keep=False)
        elif c == "R":
            q_reads(n)
        elif c == "A":
            attn(n)
        elif c == "O":
            o_blk(n)
        elif c in "KVT":
            kv_tile(int(n[0]), int(n[1]), {"T": "KV"}.get(c, c))
        else:
            raise ValueError(tk)
    return g


def prologue(s):
    s.raw("    s_cmp_ge_u32 s2, 0x100")
    s.raw("    s_cbranch_scc1 L_exit")
    if PROF:
        s.raw("    s_memtime s[70:71]")
    srds = ((SX, 0, 19267584), (SW, 8, 221184), (SWO, 16, 73728), (SRPB, 24, 1352), (SOUT, 32, 19267584),
            (SWS, 48, 0x1000000 if PROF else 73728))
    for srd, p, size in srds:
        s.raw(f"    s_load_dwordx2 s[{srd}:{srd + 1}], s[0:1], {p}")
    s.raw("    s_getpc_b64 s[68:69]")
    s.raw("    s_bfe_u32 s3, s2, 0x30003")
    s.raw("    s_lshl_b32 s3, s3, 13")
    s.raw("    v_lshl_add_u32 v12, v0, 5, s3")
    s.raw("    global_load_dword v10, v12, s[68:69]")
    for srd, p, size in srds:
        s.raw(f"    s_mov_b32 s{srd + 2}, {hex(size)}")
        s.raw(f"    s_mov_b32 s{srd + 3}, 0x20000")
    g = G()
    g.valu("v_lshrrev_b32", 4, 6, "v0")
    g.add(f"v_readfirstlane_b32 {S_W}, v4", "rfl", ["v4"], [S_W])
    TH, TW, LAT, T0, T1 = "s64", "s65", "s66", "s67", "s3"
    g.salu("s_lshr_b32", T0, "s2", 6)
    g.salu("s_and_b32", T1, "s2", 1)
    g.salu("s_lshl_b32", T1, T1, 2)
    g.salu("s_or_b32", TH, T0, T1)
    g.salu("s_bfe_u32", TW, "s2", 0x30003)
    g.salu("s_bfe_u32", T0, "s2", 0x10002)
    g.salu("s_mul_i32", LAT, T0, 86016)
    g.salu("s_bfe_u32", T0, "s2", 0x10001)
    g.salu("s_mul_i32", T0, T0, 384)
    g.salu("s_add_u32", LAT, LAT, T0)
    g.salu("s_mul_i32", T0, TH, 14)
    g.salu("s_sub_u32", T0, T0, 3)
    g.salu("s_cmp_eq_u32", None, TH, 7)
    g.salu("s_cselect_b32", S_FR, 1, 0)
    g.salu("s_cselect_b32", T0, 114, T0)
    g.salu("s_mov_b32", T1, 172032)
    g.salu("s_cselect_b32", S_RP, -172032, T1)
    g.salu("s_cselect_b32", S_BR, 3, 0)
    g.salu("s_cselect_b32", S_RS, -1, 1)
    g.salu("s_mul_i32", S_RS, S_RS, ERP)
    g.salu("s_cselect_b32", S_RB, 0, 78)
    g.salu("s_cmp_eq_u32", None, TH, 0)
    g.salu("s_cselect_b32", S_BR, 3, S_BR)
    g.salu("s_mul_i32", S_ORG, T0, 172032)
    g.salu("s_mul_i32", T0, TW, 14)
    g.salu("s_sub_u32", T0, T0, 3)
    g.salu("s_cmp_eq_u32", None, TW, 7)
    g.salu("s_cselect_b32", S_FC, 1, 0)
    g.salu("s_cselect_b32", S_BC, 1, 0)
    g.salu("s_cselect_b32", TH, 107, T0)
    g.salu("s_cselect_b32", T0, 114, T0)
    g.salu("s_mov_b32", T1, 768)
    g.salu("s_cselect_b32", S_CP, -768, T1)
    g.salu("s_cmp_eq_u32", None, TW, 0)
    g.salu("s_cselect_b32", S_BC, 1, S_BC)
    g.salu("s_lshl_b32", S_XG, S_CP, 3)
    g.salu("s_mul_i32", TH, TH, 768)
    g.salu("s_add_u32", TH, TH, LAT)
    g.salu("s_mul_i32", T1, S_RP, S_W)
    g.salu("s_add_u32", T1, T1, S_ORG)
    g.salu("s_max_i32", S_XB[0], T1, 0)
    g.salu("s_min_i32", S_XB[0], S_XB[0], 111 * 172032)
    g.salu("s_add_u32", S_XB[0], S_XB[0], TH)
    g.salu("s_add_u32", T1, T1, TH)
    for T in range(1, 5):
        g.salu("s_lshl2_add_u32", T1, S_RP, T1)
        g.salu("s_mov_b32", S_XB[T], T1)
    g.salu("s_mul_i32", T0, T0, 768)
    g.salu("s_add_u32", S_ORG, S_ORG, T0)
    g.salu("s_add_u32", S_ORG, S_ORG, LAT)
    g.salu("s_mul_i32", S_XL, S_W, ROW)
    g.salu("s_mul_i32", S_STG, S_W, STGW)
    g.salu("s_add_u32", S_STG, S_STG, STG)
    g.salu("s_mul_i32", S_96, S_W, 96)
    g.salu("s_mul_i32", S_EH, S_W, EHS)
    g.salu("s_add_u32", S_EH, S_EH, EB)
    g.salu("s_mul_i32", T0, S_W, 338)
    g.salu("s_add_u32", S_RB, S_RB, T0)
    g.salu("s_mov_b32", S_C, f32bits((48 ** -0.5) * LOG2E))
    g.salu("s_mov_b32", S_C2, f32bits((48 ** -0.5) * LOG2E) - (1 << 23))
    consts_early(g)
    g.p.build(inorder=True)
    s.run(g.p)
    s.raw("    s_waitcnt lgkmcnt(0)")


def gen():
    s = Sched()
    prologue(s)
    nst = [1]

    def stampfn(sc, op):
        k = nst[0]
        nst[0] += 1
        sc.raw(f"    s_memtime s[{70 + 2 * k}:{71 + 2 * k}]")

    if FORCE_SAFE:
        s.raw("    s_branch L_safe2")
    g = body(False)
    if PROF and PROF != "1":
        want = PROF.split(",")
        for o in g.p.ops:
            o.stamp = None
        if PROF[0] == "@":
            s.mstamps = {int(want[0][1:]) + i * int(want[1]) for i in range(13)}
            want = []
        for w in want:
            t, k = (w.split(":") + ["mfma"])[:2]
            last = t.endswith("$")
            t = t.rstrip("$")
            c = [o for o in g.p.ops if o.tag == t and o.kind == k]
            c[-1 if last else 0].stamp = w
    g.p.build()
    s.run(g.p, stampfn if PROF else None)
    sys.stderr.write(f"fast: model cycles {s.t} mfma {s.nmf} ({16 * s.nmf}) stats {s.stats}\n")
    sys.stderr.write("marks: " + " ".join(f"{n}@{t}/{16 * m}" for n, t, m in s.marks) + "\n")
    sys.stderr.write("smarks: " + " ".join(str(t) for t in s.smarks) + "\n")
    if PROF:
        k = nst[0]
        s.raw(f"    s_memtime s[{70 + 2 * k}:{71 + 2 * k}]")
        s.raw("    s_waitcnt vmcnt(0)")
        s.raw(f"    s_memtime s[{72 + 2 * k}:{73 + 2 * k}]")
        s.raw("    s_waitcnt lgkmcnt(0)")
        s.raw("    s_nop 7")
        for i in range(k + 2):
            s.raw(f"    v_mov_b32 v{i}, s{70 + 2 * i}")
        s.raw("    s_lshl_b32 s50, s2, 2")
        s.raw(f"    s_add_u32 s50, s50, {S_W}")
        s.raw("    s_lshl_b32 s50, s50, 6")
        s.raw("    s_add_u32 s50, s50, 0x100000")
        s.raw("    v_mov_b32 v20, s50")
        for i in range(4):
            s.raw(f"    buffer_store_dwordx4 v[{4 * i}:{4 * i + 3}], v20, s[{SWS}:{SWS + 3}], 0 offen offset:{16 * i}")
    s.raw("    s_nop 4")
    s.raw(f"    s_cmp_lg_u32 {S_BAD}, 0")
    s.raw("    s_cbranch_scc1 L_safe")
    s.raw("L_exit:")
    s.raw("    s_endpgm")
    s.raw("L_safe:")
    s.raw("    s_waitcnt vmcnt(0) lgkmcnt(0)")
    s.raw("    s_nop 7")
    s.raw("    s_barrier")
    s2 = Sched()
    g = G()
    consts_early(g)
    g.p.build(inorder=True)
    s2.run(g.p)
    s2.raw("L_safe2:")
    g = body(True)
    g.p.build()
    s2.run(g.p)
    s2.raw("    s_endpgm")
    sys.stderr.write(f"safe: model cycles {s2.t} mfma {s2.nmf} stats {s2.stats}\n")

    head = f"""; Fused DiNAT neighborhood attention (QKV proj + 7x7 dilated NA + out proj), one 14x14 query tile per workgroup,
; @launch grid=(256,1,1) block=(256,1,1) lds={LDS_TOTAL}
.amdgcn_target "amdgcn-amd-amdhsa--gfx950"
.text
.globl {NAME}_kernel
.p2align 8
.type {NAME}_kernel,@function
{NAME}_kernel:
"""
    tail = f""".section .rodata,"a"
.p2align 6
.amdhsa_kernel {NAME}_kernel
  .amdhsa_next_free_vgpr 512
  .amdhsa_next_free_sgpr 102
  .amdhsa_accum_offset 256
  .amdhsa_group_segment_fixed_size 0
  .amdhsa_kernarg_size 56
  .amdhsa_user_sgpr_count 2
  .amdhsa_user_sgpr_kernarg_segment_ptr 1
  .amdhsa_system_sgpr_workgroup_id_x 1
.end_amdhsa_kernel
"""
    return head + s.text() + s2.text() + tail


if __name__ == "__main__":
    out = sys.argv[1] if len(sys.argv) > 1 else "k8.s"
    open(out, "w").write(gen())
```

```python
import math
import os
import struct
import sys

sys.path.insert(0, os.path.dirname(os.path.abspath(__file__)))
from sched import Op, Prog, Sched, V, A, rs

NAME = "standalone__neighborhood_dinat__vision"
PROF = os.environ.get("PROF")
STFLAG = os.environ.get("STFLAG", " nt")
FORCE_SAFE = os.environ.get("FORCE_SAFE")
EXFIL = os.environ.get("EXFIL")
ST_GAP = int(os.environ.get("ST_GAP", 72))
X_LAT = int(os.environ.get("X_LAT", 800))

ROW = 7680
STG = 92160
STGW = 12288
NPIECE = 4
SP = 122880
SLOT = 6144
OP = 384
MID = 30720
DUMMY = 142848
FLAG = 143360
NEGB = 145344
EB = NEGB + 512
ERP = 448
EHS = 4480
LDS_TOTAL = 163840

VB = 0
KB = 90
NK = 13
QB = 168
PB = 180
SB = 196
NS = 4
OB = 212
ACCB = 228
NACC = 3
KX = (240, 241)
QX = (242, 243)
EA = (244, 245, 246)
OW, MX, SWA, ST0, ST1 = 247, 248, 249, 250, 251
RB0, RB1, TP0, TP1 = 252, 253, 254, 255
TA0, TA1 = OB + 13, OB + 14
OR = QX
OW2 = ST1
WT = (SWA, ST0)
XD = (168, 169, 170, 171)
WD = (172, 173, 174)
WT2 = (175, 176)
BOUNCE = (24, 54, 84)
WDO = (28, 29, 58)
WSA = 89
WK, WV, WQ = 0, 72, 144
XR = 216
NXR = 8
ONES = 248
STASH = 252

SX, SW, SWO, SRPB, SOUT, SWS = 4, 8, 12, 16, 20, 24
S_W, S_STG, S_RP, S_CP, S_ORG, S_BR, S_BC, S_FR, S_FC, S_EH, S_C, S_96 = [f"s{i}" for i in range(28, 40)]
S_XB = [f"s{i}" for i in range(40, 45)]
S_XG = "s45"
S_XL = "s46"
S_BAD = "s47"
S_RB = "s48"
S_RS = "s49"
S_C2 = "s3"


def f32bits(x):
    return struct.unpack("<I", struct.pack("<f", x))[0]


NEG = f32bits(-1e30)
LOG2E = math.log2(math.e)


def isreg(x):
    return isinstance(x, str) and (x in ("vcc", "m0", "scc") or (x[0] in "vas" and x[1:].isdigit()))


def fmt(x):
    if isinstance(x, int):
        return str(x) if -16 <= x <= 64 else hex(x & 0xFFFFFFFF)
    return x


class G:
    def __init__(self):
        self.p = Prog()
        self.rank = 1
        self.tag = ""
        self.st = 0

    def add(self, text, kind, rd=(), wr=(), **kw):
        kw.setdefault("rank", self.rank)
        return self.p.add(Op(text, kind, rd, wr, tag=self.tag, **kw))

    def valu(self, op, d, *src, kind="valu", **kw):
        d = f"v{d}" if isinstance(d, int) else d
        rd = [s for s in src if isreg(s)]
        return self.add(f"{op} {d}, " + ", ".join(fmt(s) for s in src), kind, rd, [d], **kw)

    def cmp(self, op, a, b):
        return self.add(f"{op} vcc, {fmt(a)}, {fmt(b)}", "valu", [s for s in (a, b) if isreg(s)], ["vcc"])

    def cnd(self, d, f, t):
        return self.add(f"v_cndmask_b32 v{d}, {fmt(f)}, {fmt(t)}, vcc", "valu",
                        [s for s in (f, t) if isreg(s)] + ["vcc"], [f"v{d}"])

    def cndk(self, d, k, t):
        self.valu("v_add_u32", d, -k, t)
        self.cnd(d, 0, f"v{d}")
        self.valu("v_add_u32", d, k, f"v{d}")

    def salu(self, op, d, *src, **kw):
        rd = [s for s in src if isreg(s)]
        wr = [d] if d else []
        return self.add(f"{op} " + ", ".join(fmt(s) for s in ([d] if d else []) + list(src)), "salu", rd, wr, **kw)

    def stmp(self):
        self.st = (self.st + 1) % 10
        return f"s{50 + self.st}"

    def mfma(self, d, a, b, c, **kw):
        op = "v_mfma_f32_16x16x32_bf16" if len(a) == 4 else "v_mfma_f32_16x16x16_bf16"
        rd = list(a) + list(b) + (list(c) if c else [])
        return self.add(f"{op} {rs(d)}, {rs(a)}, {rs(b)}, {rs(c) if c else '0'}", "mfma", rd, d,
                        srcc=tuple(c) if c else None, mop=op, **kw)

    def dsr(self, op, d, addr, off, lds, **kw):
        assert 0 <= off < 65536, off
        return self.add(f"{op} {rs(d)}, v{addr} offset:{off}", "dsr", [f"v{addr}"], d, lds=lds, **kw)

    def dsw(self, op, addr, src, off, lds, **kw):
        assert 0 <= off < 65536, off
        return self.add(f"{op} v{addr}, {rs(src)} offset:{off}", "dsw", [f"v{addr}"] + list(src), [], lds=lds,
                        size=4 * len(src), **kw)

    def srd(self, s):
        return [f"s{s + i}" for i in range(4)]

    def dma(self, voff, srd, soff, lds, **kw):
        return self.add(f"buffer_load_dwordx4 v{voff}, s[{srd}:{srd + 3}], {soff} offen lds", "dma",
                        [f"v{voff}", "m0"] + self.srd(srd) + ([soff] if isreg(soff) else []), [], lds=lds, size=16, **kw)

    def vld(self, op, d, voff, srd, soff, off=0, size=16, **kw):
        o = f" offset:{off}" if off else ""
        return self.add(f"{op} {rs(d)}, v{voff}, s[{srd}:{srd + 3}], {soff} offen{o}", "vld",
                        [f"v{voff}"] + self.srd(srd) + ([soff] if isreg(soff) else []), d, size=size, **kw)

    def vst(self, op, src, voff, srd, soff, off=0, flags="", **kw):
        o = f" offset:{off}" if off else ""
        return self.add(f"{op} {rs(src)}, v{voff}, s[{srd}:{srd + 3}], {soff} offen{o}{flags}", "vst",
                        [f"v{voff}"] + list(src) + self.srd(srd) + ([soff] if isreg(soff) else []), [],
                        size=4 * len(src), **kw)

    def bar(self, name):
        o = self.add("s_barrier", "bar", rank=0)
        o.tag = name
        o.stamp = name
        return o

    def lane(self, d):
        self.valu("v_mbcnt_lo_u32_b32", d, -1, 0)
        self.valu("v_mbcnt_hi_u32_b32", d, -1, f"v{d}")


def v(i):
    return f"v{i}"


def xrow(r):
    return (r & 15) * ROW


def xrange_(r0, r1):
    return [(xrow(r), xrow(r) + ROW, "r", None, 0, 0) for r in range(r0, r1 + 1)]


def wdma_offsets(g, dst, pitch, lane, t0, t1, t2, wo=False):
    for j in range(3):
        g.valu("v_add_u32", t0, 64 * j, v(lane))
        g.valu("v_mul_u32_u24", t1, 10923, v(t0))
        g.valu("v_lshrrev_b32", t1, 16, v(t1))
        g.valu("v_mul_u32_u24", t2, 6, v(t1))
        g.valu("v_sub_u32", t0, v(t0), v(t2))
        g.valu("v_lshrrev_b32", t2, 1, v(t1))
        g.valu("v_and_b32", t2, 4, v(t2))
        g.valu("v_xor_b32", t1, v(t1), v(t2))
        if wo:
            g.valu("v_bfe_u32", t2, v(t1), 2, 1)
            g.valu("v_mul_u32_u24", dst[j], 96, v(t2))
            g.valu("v_lshrrev_b32", t2, 3, v(t1))
            g.valu("v_lshl_add_u32", dst[j], v(t2), 2, v(dst[j]))
            g.valu("v_and_or_b32", t1, v(t1), 3, v(dst[j]))
            g.valu("v_lshrrev_b32", t2, 1, v(t0))
            g.valu("v_and_b32", t0, 1, v(t0))
            g.valu("v_lshl_add_u32", t0, v(t2), 3, v(t0))
        g.valu("v_mul_u32_u24", t1, pitch, v(t1))
        g.valu("v_lshl_add_u32", dst[j], v(t0), 4, v(t1))


def consts_early(g):
    g.lane(1)
    g.salu("s_lshl_b32", "s50", S_W, 1)
    g.salu("s_mul_i32", "s51", S_FC, 7)
    for j, g0 in enumerate((0, 64, 128, 32)):
        g.valu("v_add_u32", 2, g0, "v1")
        g.valu("v_mul_u32_u24", 3, 2731, "v2")
        g.valu("v_lshrrev_b32", 3, 16, "v3")
        g.valu("v_mul_u32_u24", 4, 24, "v3")
        g.valu("v_sub_u32", 2, "v2", "v4")
        g.valu("v_bfe_u32", 4, "v3", 1, 1)
        g.valu("v_or_b32", 4, "s50", "v4")
        g.valu("v_xor_b32", 2, "v2", "v4")
        g.valu("v_xor_b32", 3, "s51", "v3")
        g.valu("v_mul_u32_u24", 3, 768, "v3")
        g.valu("v_lshl_add_u32", XD[j], "v2", 4, "v3")
        if j < 3:
            g.valu("v_add_u32", 5 + j, S_XB[0], v(XD[j]))
            g.valu("v_max_i32", 5 + j, 0, v(5 + j))
    wdma_offsets(g, WD, 1152, 1, 2, 3, 4)


def body(safe):
    g = G()
    R_EPI, R_A, R_H, R_BG = -1, 1, 1, 2

    def xdma(T, stash=False):
        for _ in xdma_g(T, stash):
            pass

    def xdma_g(T, stash=False):
        lo = xrow(4 * T)
        for j in range(8):
            if T == 2 and j == 0:
                w_read_upto(6)
            g.tag = f"xdma{T}"
            g.rank = R_H if stash else 0
            k, rj = (j // 3, j % 3) if j < 7 else (2, 3)
            so = S_XB[T]
            if k:
                so = g.stmp()
                if k == 1:
                    g.salu("s_add_u32", so, S_XB[T], S_XG)
                else:
                    g.salu("s_lshl1_add_u32", so, S_XG, S_XB[T])
            reg = XD[rj]
            if stash:
                reg = (TP0, TP1)[j & 1]
                g.valu("v_accvgpr_read_b32", reg, f"a{STASH + rj}")
            elif T == 0 and k == 0:
                reg = 5 + rj
                so = "0"
            g.salu("s_add_u32", "m0", S_XL, lo + (1024 * j if j < 7 else 6656))
            u = 10000 * T + 1024 * j
            o = g.dma(reg, SX, so, [(lo, lo + 4 * ROW, "w", "xd", u, u + 1024)])
            o.lat = X_LAT
            yield o

    pc = [0]

    def wdma_g():
        for n, (mat, p) in enumerate(wseq):
            extra = mat == 1 and p >= 4
            if extra:
                sl = -(p - 3)
            else:
                sl = pc[0] % NPIECE
                pc[0] += 1
                if sl in occ:
                    w_read_upto(occ[sl] + 1)
                occ[sl] = n
            wslots[(mat, p)] = sl
            if mat == 3 and p == 0:
                wo_consts()
            so = f"s{60 + n % 4}"
            for j in range(3):
                g.tag = f"wdma{mat}.{p}"
                g.rank = 0
                if j == 0:
                    if mat < 3:
                        g.salu("s_add_u32", so, S_96, p * 32 * 1152 + 384 * mat)
                    else:
                        g.salu("s_lshl_b32", so, S_W, 5)
                        g.salu("s_add_u32", so, so, (48 * (p & 1) + 16 * (p >> 1)) * 384)
                if extra:
                    o = (p - 4) * 3072 + 1024 * j
                    g.salu("s_add_u32", "m0", S_XL, 8 * ROW + o)
                    lds = [(8 * ROW, 12 * ROW, "w", "xd", 20000 + o, 20000 + o + 1024)]
                else:
                    g.salu("s_add_u32", "m0", S_STG, sl * 3072 + 1024 * j)
                    lds = [(STG, STG + 4 * STGW, "w", "stg", sl * 3072 + 1024 * j, sl * 3072 + 1024 * j + 1024)]
                yield g.dma((WD if mat < 3 else WDO)[j], SW if mat < 3 else SWO, so, lds)

    occ = {}
    bc = [0]

    def wpiece_read(mat, p, sl):
        g.tag = f"wrd{mat}.{p}"
        g.rank = 0 if mat < 3 else R_BG
        lds = [(STG, STG + 4 * STGW, "r", "stg", sl * 3072, sl * 3072 + 3072)]
        wt = WT
        if sl < 0:
            sl = -sl - 1
            lds = [(8 * ROW, 12 * ROW, "r", "xd", 20000 + sl * 3072, 20000 + sl * 3072 + 3072)]
            wt = WT2
        for ct in range(3):
            f = ct * 6 + p
            if mat < 3:
                d = A({0: WQ, 1: WK, 2: WV}[mat] + 4 * f, 4)
                for half in range(2):
                    g.dsr("ds_read_b64_tr_b16", d[2 * half:2 * half + 2], wt[half], sl * 3072 + ct * 32, lds)
            else:
                d = V(BOUNCE[bc[0] % 3], 4)
                bc[0] += 1
                for half in range(2):
                    g.dsr("ds_read_b64_tr_b16", d[2 * half:2 * half + 2], WT[half], sl * 3072 + ct * 32, lds)
                so = g.stmp()
                g.salu("s_mov_b32", so, f * 1024)
                o = g.vst("buffer_store_dwordx4", d, WSA, SWS, so)
                o.wr.add(f"ws{f}")

    wseq = [(m, p) for m in (1, 2, 0, 3) for p in range(6)]
    wslots = {}
    wi = [0]

    def w_read_upto(n):
        while wi[0] < n:
            m, p = wseq[wi[0]]
            wpiece_read(m, p, wslots[(m, p)])
            wi[0] += 1

    def wo_consts():
        g.tag = "woc"
        g.rank = R_BG
        b = BOUNCE[0]
        g.lane(b)
        wdma_offsets(g, WDO, 384, b, b + 1, b + 2, b + 3, wo=True)
        g.salu("s_mul_i32", "s66", S_W, 18432)
        g.valu("v_lshl_add_u32", WSA, v(b), 4, "s66")

    def xall():
        for T in range(3):
            yield from xdma_g(T)

    xg, wg = xall(), wdma_g()

    def prefetch():
        g.tag = "pf"
        g.rank = 0
        if safe:
            return
        g.valu("v_lshl_add_u32", 8, S_W, 6, "v1")
        g.valu("v_lshlrev_b32", 9, 5, "v8")
        g.salu("s_lshr_b32", "s66", "s2", 3)
        g.salu("s_mul_i32", "s67", "s66", 6912)
        g.vld("buffer_load_dword", V(10), 9, SW, "s67", size=8).rd.add("m0")
        g.valu("v_lshlrev_b32", 11, 4, "v8")
        g.salu("s_mul_i32", "s67", "s66", 2304)
        o = g.vld("buffer_load_dword", V(10), 11, SWO, "s67", size=8)
        o.wr = set()
        o.rd.add("m0")

    def rpb_dma():
        g.tag = "rpb"
        g.rank = 0
        g.valu("v_lshlrev_b32", 12, 4, "v1")
        g.salu("s_and_b32", "s65", S_RB, 0xFFF0)
        g.salu("s_add_u32", "m0", S_EH, EHS - 1024)
        g.dma(12, SRPB, "s65", [(EB, LDS_TOTAL, "w", "ew", 7, 10)])

    def plan(pat):
        for ch in pat:
            if ch == "x":
                o = next(xg)
            elif ch == "w":
                o = next(wg)
            elif ch == "p":
                prefetch()
            elif ch == "r":
                rpb_dma()

    PLAN = os.environ.get("PLAN", "xxxxxxxxwww|xwwxwwxwwxwwxwwxwwxwwxwrxwwxwwxwwxwwxwwxwwxwwx")
    n0 = len(g.p.ops)
    plan(PLAN.split("|")[0])
    for o in g.p.ops[n0:]:
        o.gap = 4

    g.tag = "consts"
    g.rank = 0
    L15, GG, QR, QC = 13, 14, 15, 16
    g.valu("v_and_b32", L15, 15, "v1")
    g.valu("v_lshrrev_b32", GG, 4, "v1")
    g.valu("v_lshrrev_b32", QR, 2, v(L15))
    g.valu("v_and_b32", QC, 3, v(L15))
    g.valu("v_and_b32", 17, 1, v(GG))
    g.valu("v_lshl_add_u32", 18, v(GG), 3, v(QR))
    for half in range(2):
        g.valu("v_xor_b32", 19, half, "v17")
        g.valu("v_lshl_add_u32", 19, "v19", 2, "v18")
        g.valu("v_mul_u32_u24", 19, 96, "v19")
        g.valu("v_lshl_add_u32", 19, v(QC), 3, "v19")
        g.valu("v_add_u32", WT[half], S_STG, "v19")
        g.valu("v_add_u32", 19, S_XL, "v19")
        g.valu("v_add_u32", WT2[half], 8 * ROW, "v19")

    def xaddr(dst, r, c, gg, t):
        g.valu("v_and_b32", t, 3, v(r))
        g.valu("v_mul_u32_u24", r, ROW, v(r))
        g.valu("v_lshlrev_b32", t, 1, v(t))
        g.valu("v_bfe_u32", dst[1], v(c), 1, 1)
        g.valu("v_or_b32", t, v(t), v(dst[1]))
        g.valu("v_xor_b32", t, v(t), v(gg))
        g.valu("v_lshl_add_u32", r, v(t), 4, v(r))
        g.valu("v_mul_u32_u24", t, 384, v(c))
        g.valu("v_add_u32", dst[0], v(r), v(t))
        g.valu("v_xor_b32", dst[1], 64, v(dst[0]))

    g.valu("v_mov_b32", 17, v(QR))
    xaddr(KX, 17, QC, GG, 18)
    g.rank = R_BG
    g.valu("v_add_u32", 17, 3, v(QR))
    g.valu("v_add_u32", 19, 3, v(QC))
    xaddr(QX, 17, 19, GG, 18)
    for j in range(4):
        g.valu("v_accvgpr_write_b32", f"a{STASH + j}", v(XD[j]))
    g.valu("v_mov_b32", 17, 0x3F803F80)
    for j in range(4):
        g.valu("v_accvgpr_write_b32", f"a{ONES + j}", "v17")
    g.valu("v_mov_b32", MX, 0)
    g.salu("s_and_b32", "s66", S_W, 1)
    g.salu("s_lshl_b32", "s66", "s66", 2)
    g.salu("s_lshr_b32", "s67", S_W, 1)
    g.salu("s_lshl_b32", "s67", "s67", 3)
    g.valu("v_lshrrev_b32", 18, 1, v(L15))
    g.valu("v_xor_b32", 18, v(GG), "v18")
    g.valu("v_xor_b32", 18, "s66", "v18")
    g.valu("v_mul_u32_u24", 17, OP, v(L15))
    g.valu("v_lshl_add_u32", 17, "v18", 4, "v17")
    g.valu("v_add_u32", 17, "s67", "v17")
    g.valu("v_add_u32", OW, MID, "v17")
    g.valu("v_add_u32", OW2, SP, "v17")

    def ea_generic(first, qr, qc, gg, t0, t1):
        g.valu("v_sub_u32", t0, v(gg), v(qr))
        g.valu("v_mul_i32_i24", t0, ERP, v(t0))
        g.valu("v_lshlrev_b32", t1, 4, v(qc))
        g.valu("v_sub_u32", t0, v(t0), v(t1))
        g.valu("v_add_u32", t0, S_EH, v(t0))
        if first:
            g.valu("v_max_u32", t1, S_BR, v(qr))
            g.valu("v_sub_u32", t1, v(gg), v(t1))
        else:
            g.valu("v_sub_u32", t1, v(gg), v(qr))
        for rel in range(3):
            g.valu("v_add_u32", EA[rel], 4 * rel, v(t1))
            g.cmp("v_cmp_gt_u32", 7, v(EA[rel]))
            g.valu("v_add_u32", EA[rel], 48 + 4 * rel * ERP - NEGB, v(t0))
            g.cnd(EA[rel], 0, v(EA[rel]))
            g.valu("v_add_u32", EA[rel], NEGB, v(EA[rel]))

    ea_generic(True, QR, QC, GG, 17, 18)

    g.tag = "etab"
    g.rank = R_BG
    EV, EVO, EM, EAD, EW = 30, (50, 51), (52, 53), (60, 61), 62
    g.valu("v_min_u32", 20, 55, "v1")
    g.valu("v_lshlrev_b32", EW, 3, "v20")
    g.salu("s_mul_i32", "s64", S_FR, 9 * ERP)
    g.salu("s_add_u32", "s64", "s64", S_EH)
    g.valu("v_add_u32", EW, "s64", v(EW))
    g.valu("v_lshrrev_b32", 21, 1, "v20")
    g.valu("v_and_b32", 20, 1, "v20")
    g.valu("v_lshlrev_b32", 20, 1, "v20")
    g.valu("v_add_u32", 22, -12, "v21")
    g.cmp("v_cmp_lt_u32", 11, "v21")
    g.cnd(22, "v21", "v22")
    g.valu("v_mov_b32", 23, S_BC)
    g.cnd(23, 0, "v23")
    g.salu("s_lshl_b32", "s66", S_FC, 1)
    g.salu("s_sub_u32", "s66", 1, "s66")
    for jj in range(2):
        g.valu("v_add_u32", 63, jj, "v20")
        g.valu("v_add3_u32", 64, "v22", "v63", -6)
        g.valu("v_add_u32", 65, 3, "v64")
        g.valu("v_and_b32", 66, 12, "v22")
        g.valu("v_add3_u32", 66, "v66", "v63", -3)
        g.cmp("v_cmp_ne_u32", 0, "v23")
        g.cnd(65, "v65", "v66")
        g.cmp("v_cmp_gt_u32", 7, "v65")
        g.valu("v_mul_i32_i24", 64, "s66", "v64")
        g.valu("v_add_lshl_u32", 64, "v64", 6, 1)
        g.cnd(EVO[jj], 0, "v64")
        g.valu("v_mov_b32", 64, f32bits(LOG2E))
        g.cnd(EM[jj], 0, "v64")
        g.valu("v_mov_b32", 64, 0)
        g.valu("v_mov_b32", 65, NEG)
        g.cnd(EAD[jj], "v65", "v64")
    plan(PLAN.split("|")[1])
    for o in xg:
        pass
    for o in wg:
        pass
    w_read_upto(len(wseq))
    g.tag = "etab"
    g.rank = R_BG
    g.salu("s_and_b32", "s64", S_RB, 15)
    g.salu("s_add_u32", "s64", "s64", S_EH)
    for jj in range(2):
        g.valu("v_add_u32", EVO[jj], "s64", v(EVO[jj]))
    for i in range(10):
        for jj in range(2):
            g.dsr("ds_read_u16", V(EV + 2 * i + jj), EVO[jj], EHS - 1024 + 26 * i, [(EB, LDS_TOTAL, "r", "ew", 7, 10)],
                  nb=int(os.environ.get("E_NB", 4000)))
    for i in range(10):
        for jj in range(2):
            r = EV + 2 * i + jj
            g.valu("v_lshlrev_b32", r, 16, v(r))
            g.valu("v_fma_f32", r, v(r), v(EM[jj]), v(EAD[jj]))
        g.dsw("ds_write_b64", EW, V(EV + 2 * i, 2), 0, [(EB, LDS_TOTAL, "w", "ew", 0, 10)])
        g.valu("v_add_u32", EW, S_RS, v(EW))
    g.valu("v_mov_b32", 64, NEG)
    g.valu("v_mov_b32", 65, NEG)
    g.valu("v_lshlrev_b32", 63, 3, "v1")
    g.valu("v_add_u32", 63, NEGB, "v63")
    g.dsw("ds_write_b64", 63, V(64, 2), 0, [(NEGB, EB, "w", "ew", 20, 21)])
    ELDS = [(NEGB, LDS_TOTAL, "r", "ew", 0, 100)]
    ELDSX = [(NEGB, LDS_TOTAL, "r", None, 0, 0)]

    xp = [0]
    ap = [0]
    base = {KX: 0, QX: 0}

    def rebase(regs, off, span=320):
        b = base[regs]
        if not (b <= off and off + span - b < 65536):
            nb = (off // 30720) * 30720
            g.rank = R_EPI
            for r in regs:
                g.valu("v_add_u32", r, nb - b, v(r))
            base[regs] = b = nb
        return off - b

    def xfrag(addr, off, lds):
        d = A(XR + 4 * (xp[0] % NXR), 4)
        xp[0] += 1
        g.dsr("ds_read_b128", d, addr, off, lds, rank=R_EPI)
        return d

    def xfrags(pair, off, lds):
        return [xfrag(pair[ks & 1], off + (ks >> 1) * 128, lds) for ks in range(6)]

    def acc():
        d = V(ACCB + 4 * (ap[0] % NACC), 4)
        ap[0] += 1
        return d

    def wf(wb, ct, ks):
        return A(wb + 4 * (ct * 6 + ks), 4)

    kslot = {}
    kfree = list(range(NK))

    def cvt(d, a, b, rank=R_EPI):
        g.valu("v_cvt_pk_bf16_f32", d, a, b, rank=rank)

    def k_epi(r, c, ct, ac):
        kb = KB + 6 * kslot[(r, c)] + 2 * ct
        cvt(kb, ac[0], ac[1])
        cvt(kb + 1, ac[2], ac[3])

    def v_epi(r, c, ct, ac):
        for m in range(2):
            cvt(VB + 30 * ct + (2 * c + m) * 3 + r % 3, ac[2 * m], ac[2 * m + 1])

    def mm(kind, ac, ct, ks, xf):
        c = ac if ks else None
        if kind == "K":
            g.mfma(ac, wf(WK, ct, ks), xf, c, rank=1)
        elif kind == "V":
            g.mfma(ac, xf, wf(WV, ct, ks), c, rank=1)
        else:
            g.mfma(ac, wf(WQ, ct, ks), xf, c, rank=1)

    def kv_tile(r, c, kinds="KV"):
        g.tag = f"{kinds}{r}{c}"
        off = rebase(KX, xrow(4 * r) + 1536 * c)
        xf = xfrags(KX, off, xrange_(4 * r, 4 * r + 3))
        if "K" in kinds:
            kslot[(r, c)] = kfree.pop(0)
        for kind in kinds:
            for ct in range(3):
                ac = acc()
                for ks in range(6):
                    mm(kind, ac, ct, ks, xf[ks])
                (k_epi if kind == "K" else v_epi)(r, c, ct, ac)

    ga = [0]

    def group(kind, tiles):
        g.tag = f"g{kind}{tiles[0][0]}{tiles[0][1]}"
        accs = {}
        for t in tiles:
            if kind == "K":
                kslot[t] = kfree.pop(0)
            for ct in range(3):
                accs[t + (ct,)] = V(PB + 4 * (ga[0] % 12), 4)
                ga[0] += 1
        for ks in range(6):
            for (r, c) in tiles:
                off = rebase(KX, xrow(4 * r) + 1536 * c)
                xf = xfrag(KX[ks & 1], off + (ks >> 1) * 128, xrange_(4 * r, 4 * r + 3))
                for ct in range(3):
                    mm(kind, accs[(r, c, ct)], ct, ks, xf)
        for (r, c) in tiles:
            for ct in range(3):
                (k_epi if kind == "K" else v_epi)(r, c, ct, accs[(r, c, ct)])

    slots = {"00": SP, "01": SP + SLOT, "02": SP + 2 * SLOT}
    for k, n in enumerate(("s01", "10", "11", "12", "20", "21", "22", "s2", "b1", "b2")):
        slots[n] = MID + k * SLOT

    def oc(n, rw):
        return [(slots[n], slots[n] + SLOT, rw, "oc", slots[n], slots[n] + SLOT)]

    def ow(n):
        return (OW2, slots[n] - SP) if slots[n] >= SP else (OW, slots[n] - MID)

    qreg = {}
    qp = [0]

    def qalloc(n):
        qreg[n] = QB + 6 * (qp[0] % 2)
        qp[0] += 1
        return qreg[n]

    def lanebits(t):
        g.lane(t)

    def q_xf(n):
        g.rank = R_H
        if n[0] in "012":
            b, j = int(n[0]), int(n[1])
            off = rebase(QX, b * 4 * ROW + j * 1536)
            return xfrags(QX, off, xrange_(3 + 4 * b, 6 + 4 * b))
        if n == "s2":
            off = rebase(QX, 2 * 4 * ROW + 3 * 1536)
            return xfrags(QX, off, xrange_(11, 14))
        if n == "s01":
            off = rebase(QX, 3 * 1536, span=320)
            g.rank = R_H
            lanebits(TP0)
            g.valu("v_bfe_u32", TP0, v(TP0), 1, 1)
            g.valu("v_lshlrev_b32", TP1, 4, v(TP0))
            g.valu("v_xor_b32", TP1, v(TP1), v(QX[0]))
            g.valu("v_mul_u32_u24", TP0, 4 * ROW - 768, v(TP0))
            g.valu("v_add_u32", TP0, v(TP0), v(TP1))
            g.valu("v_xor_b32", TP1, 64, v(TP0))
            return xfrags((TP0, TP1), off, xrange_(3, 10))
        if n == "b1":
            t = acc()
            t = [int(x[1:]) for x in t]
            lanebits(t[0])
            g.valu("v_lshrrev_b32", t[1], 4, v(t[0]))
            g.valu("v_bfe_u32", t[2], v(t[0]), 2, 1)
            g.valu("v_add_u32", t[2], 15, v(t[2]))
            g.valu("v_and_b32", t[2], 15, v(t[2]))
            g.valu("v_bfe_u32", t[3], v(t[0]), 3, 1)
            g.valu("v_and_b32", t[0], 3, v(t[0]))
            g.valu("v_lshl_add_u32", t[0], v(t[3]), 2, v(t[0]))
            g.valu("v_add_u32", t[0], 3, v(t[0]))
            xaddr(QX, t[2], t[0], t[1], t[3])
            base[QX] = 0
        return xfrags(QX, 0 if n == "b1" else 8 * 384, xrange_(15, 16))

    pend = {}

    def q_reads(n):
        g.tag = f"Q{n}"
        pend[n] = q_xf(n)

    def q_blk(n, park=False, keep=True):
        g.tag = f"Q{n}"
        xf = pend.pop(n) if n in pend else q_xf(n)
        qb = qalloc(n) if keep else None
        for ct in range(3):
            ac = acc()
            for ks in range(6):
                mm("Q", ac, ct, ks, xf[ks])
            for i in range(4):
                g.valu("v_mul_f32", ac[i], S_C2 if ct == 1 else S_C, ac[i], rank=R_EPI)
            d = V(qb + 2 * ct, 2) if keep else ac[:2]
            cvt(d[0], ac[0], ac[1])
            cvt(d[1], ac[2], ac[3])
            if park:
                a, o = ow(n)
                g.dsw("ds_write_b64", a, d, o + 128 * ct, oc(n, "w"), rank=R_EPI)

    def wo_load():
        g.tag = "wo"
        g.rank = R_H
        lanebits(TP0)
        g.salu("s_mul_i32", "s66", S_W, 18432)
        g.valu("v_lshl_add_u32", TP0, v(TP0), 4, "s66")
        for f in range(18):
            so = g.stmp()
            g.salu("s_mov_b32", so, (f >> 2) * 4096)
            o = g.vld("buffer_load_dwordx4", A(WQ + 4 * f, 4), TP0, SWS, so, off=(f & 3) * 1024)
            o.rd.add(f"ws{f}")
        t = [int(x[1:]) for x in acc()]
        lanebits(t[0])
        g.valu("v_and_b32", t[1], 15, v(t[0]))
        g.valu("v_lshrrev_b32", t[0], 4, v(t[0]))
        g.valu("v_lshrrev_b32", t[2], 1, v(t[1]))
        g.valu("v_mul_u32_u24", t[3], OP, v(t[1]))
        g.valu("v_xor_b32", OR[1], v(t[0]), v(t[2]))
        g.valu("v_lshl_add_u32", OR[0], v(OR[1]), 4, v(t[3]))
        g.valu("v_xor_b32", OR[1], 64, v(OR[0]))
        base[OR] = 0
        g.salu("s_lshl_b32", "s66", S_W, 1)
        g.valu("v_lshrrev_b32", SWA, 1, v(t[0]))
        g.valu("v_or_b32", SWA, "s66", v(SWA))
        g.valu("v_mov_b32", RB1, v(SWA))
        g.valu("v_xor_b32", SWA, v(SWA), v(t[2]))
        g.valu("v_lshl_add_u32", SWA, v(SWA), 4, v(t[3]))
        g.valu("v_and_b32", t[3], 1, v(t[0]))
        g.valu("v_lshl_add_u32", SWA, v(t[3]), 3, v(SWA))
        base[(SWA,)] = 0
        g.salu("s_mul_i32", "s67", S_W, 4 * OP)
        g.valu("v_mul_u32_u24", t[0], OP, v(t[0]))
        g.valu("v_add_u32", t[0], "s67", v(t[0]))
        g.valu("v_lshlrev_b32", t[3], 3, v(t[3]))
        g.valu("v_xor_b32", RB0, v(t[1]), v(t[3]))
        g.valu("v_xor_b32", RB0, v(RB0), v(RB1))
        g.valu("v_lshl_add_u32", RB0, v(RB0), 4, v(t[0]))
        g.valu("v_xor_b32", RB1, v(RB1), v(t[2]))
        g.valu("v_lshl_add_u32", RB1, v(RB1), 4, v(t[0]))
        g.valu("v_and_b32", t[1], 1, v(t[1]))
        g.valu("v_lshl_add_u32", RB1, v(t[1]), 3, v(RB1))
        base[(RB0, RB1)] = 0

    stpos = [None]

    def st_addr(n):
        g.rank = R_H
        full = n[0] in "012"
        if full and stpos[0] is not None:
            b, j = int(n[0]), int(n[1])
            db, dj = b - stpos[0][0], j - stpos[0][1]
            s0, s1 = g.stmp(), g.stmp()
            g.salu("s_mul_i32", s0, S_RP, 4 * db)
            g.salu("s_mul_i32", s1, S_CP, 4 * dj)
            g.salu("s_add_u32", s0, s0, s1)
            g.valu("v_add_u32", ST0, s0, v(ST0))
            g.valu("v_add_u32", ST1, s0, v(ST1))
            stpos[0] = (b, j)
            return
        lanebits(TP0)
        s0, s1 = g.stmp(), g.stmp()
        g.valu("v_lshrrev_b32", TP1, 4, v(TP0))
        if full or n[0] == "s":
            r0, c0 = (3 + 4 * int(n[0]), 3 + 4 * int(n[1])) if full else ((3, 15) if n == "s01" else (11, 15))
            g.salu("s_add_u32", s0, S_W, r0)
            g.salu("s_mov_b32", s1, c0)
        else:
            g.salu("s_and_b32", s0, S_W, 1)
            g.salu("s_add_u32", s0, s0, 15)
            g.salu("s_lshr_b32", s1, S_W, 1)
            g.salu("s_lshl2_add_u32", s1, s1, 3 if n == "b1" else 11)
        if n in ("s2", "b2"):
            g.valu("v_add_u32", ST1, s1, v(TP1))
            g.cmp("v_cmp_gt_u32", 17, v(ST1))
        g.salu("s_mul_i32", s0, s0, S_RP)
        g.salu("s_mul_i32", s1, s1, S_CP)
        g.salu("s_add_u32", s0, s0, s1)
        g.salu("s_add_u32", s0, s0, S_ORG)
        if n == "s01":
            g.valu("v_and_b32", ST1, 2, v(TP1))
            g.valu("v_lshlrev_b32", ST1, 1, v(ST1))
            g.valu("v_mul_i32_i24", ST1, S_RP, v(ST1))
            g.valu("v_and_b32", ST0, 1, v(TP1))
            g.valu("v_mad_i32_i24", ST0, v(ST0), S_CP, v(ST1))
        else:
            g.valu("v_mul_i32_i24", ST0, S_CP, v(TP1))
        g.valu("v_add_u32", ST0, s0, v(ST0))
        if n in ("s2", "b2"):
            g.cndk(ST0, 0x80000000, v(ST0))
        g.valu("v_and_b32", TP0, 15, v(TP0))
        g.valu("v_lshl_add_u32", ST1, v(TP0), 3, v(ST0))
        g.valu("v_lshlrev_b32", TP1, 3, v(TP1))
        g.valu("v_and_b32", TP1, 8, v(TP1))
        g.valu("v_xor_b32", TP0, v(TP0), v(TP1))
        g.valu("v_lshl_add_u32", ST0, v(TP0), 4, v(ST0))
        stpos[0] = (int(n[0]), int(n[1])) if full else None

    staged = []

    def flush():
        for n in staged:
            g.tag = f"F{n}"
            st_addr(n)
            off = rebase((RB0, RB1), slots[n])
            lds = [(slots[n], slots[n] + SLOT, "r", None, 0, 0)]
            d0, d1 = A(STASH, 4), V(TP0, 2)
            g.dsr("ds_read_b128", d0, RB0, off, lds, rank=R_H)
            g.dsr("ds_read_b64", d1, RB1, off + 256, lds, rank=R_H)
            g.vst("buffer_store_dwordx4", d0, ST0, SOUT, "0", flags=STFLAG, rank=R_H)
            g.vst("buffer_store_dwordx2", d1, ST1, SOUT, "0", off=256, flags=STFLAG, rank=R_H)
        del staged[:]

    def o_blk(n):
        g.tag = f"O{n}"
        off = rebase(OR, slots[n])
        xf = xfrags(OR, off, [(slots[n], slots[n] + SLOT, "r", None, 0, 0)])
        g.bar(f"bO{n}")
        flush()
        g.tag = f"O{n}"
        off = rebase((SWA,), slots[n])
        for ct in range(3):
            ac = acc()
            for ks in range(6):
                mm("Q", ac, ct, ks, xf[ks])
            cvt(ac[0], ac[0], ac[1])
            cvt(ac[1], ac[2], ac[3])
            g.dsw("ds_write_b64", SWA, ac[:2], off + 128 * ct,
                  [(slots[n], slots[n] + SLOT, "w", "os", slots[n] + ct, slots[n] + ct + 1)], rank=R_EPI)
        staged.append(n)

    sp = [0]
    pq = [0]
    pzero = set()

    def attn(n):
        g.tag = f"A{n}"
        g.rank = R_A
        qn = "s01" if n in ("s0", "s1") else n
        mask = None
        if n[0] in "012":
            b, j = int(n[0]), int(n[1])
            rows, cols = (b, b + 1, b + 2), [(j, 2), (j + 1, 2), (j + 2, 1)]
            eoff = 192 if j == 0 else 0
            frees = [(b, j)]
        elif n[0] == "s":
            b, j = int(n[1]), 3
            rows, cols = (b, b + 1, b + 2), [(3, 2), (4, 2)]
            eoff = 32 if n == "s1" else 0
            mask = {"s0": 0, "s1": 1}.get(n)
            frees = [(b, 3), (b, 4)]
        else:
            b, j = 3, (0 if n == "b1" else 2)
            rows = (3, 4)
            cols = [(0, 2), (1, 2), (2, 2), (3, 1)] if n == "b1" else [(2, 2), (3, 2), (4, 2)]
            eoff = 0
            frees = []
        if n in ("10", "b1"):
            t = [SB + 4 * (sp[0] % NS) + i for i in range(4)] + [SB + 4 * ((sp[0] + 1) % NS) + i for i in range(4)]
            g.lane(t[4])
        if n == "10":
            g.valu("v_bfe_u32", t[0], v(t[4]), 2, 2)
            g.valu("v_and_b32", t[1], 3, v(t[4]))
            g.valu("v_lshrrev_b32", t[4], 4, v(t[4]))
            ea_generic(False, t[0], t[1], t[4], t[2], t[3])
        if n == "b1":
            g.valu("v_bfe_u32", t[0], v(t[4]), 2, 1)
            g.valu("v_lshrrev_b32", t[1], 1, v(t[4]))
            g.valu("v_and_b32", t[1], 4, v(t[1]))
            g.valu("v_and_or_b32", t[1], v(t[4]), 3, v(t[1]))
            g.valu("v_bfe_u32", t[5], v(t[4]), 3, 1)
            g.valu("v_lshrrev_b32", t[4], 4, v(t[4]))
            ea_generic(False, t[0], t[1], t[4], t[2], t[3])
            g.valu("v_xor_b32", t[5], 1, v(t[5]))
            g.valu("v_mul_u32_u24", EA[2], 192, v(t[5]))
            for rel in range(2):
                g.valu("v_add_u32", EA[rel], v(EA[rel]), v(EA[2]))
        if n == "b2":
            for rel in range(2):
                g.valu("v_sub_u32", EA[rel], v(EA[rel]), v(EA[2]))
        if qn not in qreg:
            qb = qalloc(qn)
            a, o = ow(qn)
            for ct in range(3):
                g.dsr("ds_read_b64", V(qb + 2 * ct, 2), a, o + 128 * ct, oc(qn, "r"), rank=0)
        qb = qreg.pop(qn)
        vbase = 6 * j
        tiles = [(r, c, nh) for (c, nh) in cols for r in rows]
        used = {(2 * c + m) * 3 + r % 3 - vbase for (r, c, nh) in tiles for m in range(nh)}
        nst = (max(used) >> 2) + 1

        def s_tile(r, c):
            s = V(SB + 4 * (sp[0] % NS), 4)
            sp[0] += 1
            g.dsr("ds_read_b128", s, EA[r - b], eoff + (c - j) * 64, ELDSX if n[0] == "b" else ELDS, rank=0)
            kb = KB + 6 * kslot[(r, c)]
            g.mfma(s, V(kb, 4), V(qb, 4), s, rank=0)
            g.mfma(s, V(kb + 2, 4), V(qb + 2, 4), s, rank=0)
            return s

        if safe:
            first = True
            for (r, c, nh) in tiles:
                s = s_tile(r, c)
                for m in range(nh):
                    if first:
                        g.valu("v_max_f32", MX, s[0], s[1])
                        first = False
                    else:
                        g.valu("v_max3_f32", MX, v(MX), s[2 * m], s[2 * m + 1])
            for which in (16, 32):
                g.valu("v_mov_b32", TA0, v(MX))
                g.add(f"v_permlane{which}_swap_b32 v{MX}, v{TA0}", "perm", [v(MX), v(TA0)], [v(MX), v(TA0)])
                g.valu("v_max_f32", MX, v(MX), v(TA0))

        def preg(idx):
            return PB + 4 * ((pq[0] + (idx >> 2)) % 4) + (idx & 3)

        written = set()
        step = 0
        for (r, c, nh) in tiles:
            s = s_tile(r, c)
            for i in range(2 * nh):
                if safe:
                    g.valu("v_sub_f32", s[i], s[i], v(MX))
                g.valu("v_exp_f32", s[i], s[i], kind="trans")
            for m in range(nh):
                idx = (2 * c + m) * 3 + r % 3 - vbase
                cvt(preg(idx), s[2 * m], s[2 * m + 1], rank=R_A)
                pzero.discard(preg(idx))
                written.add(idx)
            while step < nst and all((i in written) or (i not in used) for i in range(4 * step, 4 * step + 4)):
                for i in range(4 * step, 4 * step + 4):
                    if i not in used and preg(i) not in pzero:
                        g.valu("v_mov_b32", preg(i), 0)
                        pzero.add(preg(i))
                pr = V(preg(4 * step), 4)
                for td in range(3):
                    o = V(OB + 4 * td, 4)
                    g.mfma(o, V(VB + 30 * td + vbase + 4 * step, 4), pr, o if step else None, rank=0)
                o = V(OB + 12, 4)
                g.mfma(o, A(ONES, 4), pr, o if step else None, rank=0)
                step += 1
        assert step == nst
        pq[0] = (pq[0] + nst) % 4
        for t in frees:
            kfree.append(kslot.pop(t))
        g.rank = R_A
        g.valu("v_rcp_f32", TA0, v(OB + 12), kind="trans")
        if not safe:
            g.valu("v_max3_f32", MX, v(MX), v(OB + 12), v(TA0))
        a, off = ow(qn)
        if mask is not None:
            g.lane(TA1)
            g.valu("v_and_b32", TA1, 2, v(TA1))
            g.cmp("v_cmp_eq_u32", 2 * mask, v(TA1))
            g.cndk(TA1, DUMMY - off, v(a))
            a = TA1
        for td in range(3):
            o = V(OB + 4 * td, 4)
            for i in range(4):
                g.valu("v_mul_f32", o[i], o[i], v(TA0))
            cvt(o[0], o[0], o[1], rank=R_A)
            cvt(o[1], o[2], o[3], rank=R_A)
            g.dsw("ds_write_b64", a, o[:2], off + 128 * td, oc(qn, "w"))

    def flag_write():
        if safe:
            return
        g.tag = "flag"
        g.rank = 0
        g.valu("v_mov_b32", TA1, f32bits(2.0 ** 60))
        g.cmp("v_cmp_gt_f32", v(MX), v(TA1))
        g.add("s_cmp_lg_u64 vcc, 0\n    s_cselect_b32 s66, 1, 0", "salu", ["vcc"], ["s66"])
        g.valu("v_mov_b32", TA0, "s66")
        g.salu("s_lshl2_add_u32", "s67", S_W, FLAG)
        g.valu("v_mov_b32", TA1, "s67")
        g.dsw("ds_write_b32", TA1, V(TA0), 0, [(FLAG, FLAG + 16, "w", "fl", 0, 1)])

    def flag_read():
        if safe:
            return
        g.tag = "flagr"
        g.rank = R_BG
        g.valu("v_mov_b32", TA1, FLAG)
        s = V(SB, 4)
        g.dsr("ds_read_b128", s, TA1, 0, [(FLAG, FLAG + 16, "r", None, 0, 0)])
        g.valu("v_or3_b32", TA0, s[0], s[1], s[2])
        g.valu("v_or_b32", TA0, v(TA0), s[3])
        g.add(f"v_readfirstlane_b32 {S_BAD}, v{TA0}", "rfl", [v(TA0)], [S_BAD])

    for tk in os.environ.get("PHA", "b1 K0:0123 b2 K1:0 K1:1 K1:2 K1:3 V0:012 V1:0 V1:1 V1:2 b3 K2:0 K2:1 K2:2 K2:3 V2:0 V2:1 V2:2").split():
        if tk[0] == "b":
            g.bar(tk)
        else:
            group(tk[0], [(int(tk[1]), int(c)) for c in tk[3:]])
    order = os.environ.get("ORDER", """
        Q00 V03 V13 V23 K04 Q01 b4 A00 X3 V04 T14 Q02 A01 T24 Rs01 b5 Ks01 X4 A02 T30 Q10 P11 R12 b6 P12 As0
        T31 T32 P20 P21 A10 P22 Rs2 b7 Ps2 T33 Pb1 Pb2 WO A11 T34 O00 O01 A12 T40 O02 O10 As1 T41 T42 O11 A20 T43 O12 Os01
        A21 T44 O20 A22 O21 As2 O22 Ab1 Os2 Ab2 FW Ob1 FR Ob2 b12 FL""").split()
    for tk in order:
        c, n = tk[0], tk[1:]
        if tk == "WO":
            wo_load()
        elif tk == "FL":
            flush()
        elif tk == "FW":
            flag_write()
        elif tk == "FR":
            flag_read()
        elif tk == "Ks01":
            q_blk("s01", park=True, keep=True)
        elif c == "b":
            g.bar(tk)
        elif c == "X":
            xdma(int(n), stash=True)
        elif c == "Q":
            q_blk(n)
        elif c == "P":
            q_blk(n, park=True, keep=False)
        elif c == "R":
            q_reads(n)
        elif c == "A":
            attn(n)
        elif c == "O":
            o_blk(n)
        elif c in "KVT":
            kv_tile(int(n[0]), int(n[1]), {"T": "KV"}.get(c, c))
        else:
            raise ValueError(tk)
    return g


def prologue(s):
    s.raw("    s_cmp_ge_u32 s2, 0x100")
    s.raw("    s_cbranch_scc1 L_exit")
    if PROF:
        s.raw("    s_memtime s[70:71]")
    if EXFIL:
        s.raw("    s_memrealtime s[100:101]")
    srds = ((SX, 0, 19267584), (SW, 8, 221184), (SWO, 16, 73728), (SRPB, 24, 1352), (SOUT, 32, 19267584),
            (SWS, 48, 0x1000000 if PROF else 73728))
    for srd, p, size in srds:
        s.raw(f"    s_load_dwordx2 s[{srd}:{srd + 1}], s[0:1], {p}")
    s.raw("    s_getpc_b64 s[68:69]")
    s.raw("    s_bfe_u32 s3, s2, 0x30003")
    s.raw("    s_lshl_b32 s3, s3, 13")
    s.raw("    v_lshl_add_u32 v12, v0, 5, s3")
    s.raw("    global_load_dword v10, v12, s[68:69]")
    for srd, p, size in srds:
        s.raw(f"    s_mov_b32 s{srd + 2}, {hex(size)}")
        s.raw(f"    s_mov_b32 s{srd + 3}, 0x20000")
    g = G()
    g.valu("v_lshrrev_b32", 4, 6, "v0")
    g.add(f"v_readfirstlane_b32 {S_W}, v4", "rfl", ["v4"], [S_W])
    TH, TW, LAT, T0, T1 = "s64", "s65", "s66", "s67", "s3"
    g.salu("s_lshr_b32", T0, "s2", 6)
    g.salu("s_and_b32", T1, "s2", 1)
    g.salu("s_lshl_b32", T1, T1, 2)
    g.salu("s_or_b32", TH, T0, T1)
    g.salu("s_bfe_u32", TW, "s2", 0x30003)
    g.salu("s_bfe_u32", T0, "s2", 0x10002)
    g.salu("s_mul_i32", LAT, T0, 86016)
    g.salu("s_bfe_u32", T0, "s2", 0x10001)
    g.salu("s_mul_i32", T0, T0, 384)
    g.salu("s_add_u32", LAT, LAT, T0)
    g.salu("s_mul_i32", T0, TH, 14)
    g.salu("s_sub_u32", T0, T0, 3)
    g.salu("s_cmp_eq_u32", None, TH, 7)
    g.salu("s_cselect_b32", S_FR, 1, 0)
    g.salu("s_cselect_b32", T0, 114, T0)
    g.salu("s_mov_b32", T1, 172032)
    g.salu("s_cselect_b32", S_RP, -172032, T1)
    g.salu("s_cselect_b32", S_BR, 3, 0)
    g.salu("s_cselect_b32", S_RS, -1, 1)
    g.salu("s_mul_i32", S_RS, S_RS, ERP)
    g.salu("s_cselect_b32", S_RB, 0, 78)
    g.salu("s_cmp_eq_u32", None, TH, 0)
    g.salu("s_cselect_b32", S_BR, 3, S_BR)
    g.salu("s_mul_i32", S_ORG, T0, 172032)
    g.salu("s_mul_i32", T0, TW, 14)
    g.salu("s_sub_u32", T0, T0, 3)
    g.salu("s_cmp_eq_u32", None, TW, 7)
    g.salu("s_cselect_b32", S_FC, 1, 0)
    g.salu("s_cselect_b32", S_BC, 1, 0)
    g.salu("s_cselect_b32", TH, 107, T0)
    g.salu("s_cselect_b32", T0, 114, T0)
    g.salu("s_mov_b32", T1, 768)
    g.salu("s_cselect_b32", S_CP, -768, T1)
    g.salu("s_cmp_eq_u32", None, TW, 0)
    g.salu("s_cselect_b32", S_BC, 1, S_BC)
    g.salu("s_lshl_b32", S_XG, S_CP, 3)
    g.salu("s_mul_i32", TH, TH, 768)
    g.salu("s_add_u32", TH, TH, LAT)
    g.salu("s_mul_i32", T1, S_RP, S_W)
    g.salu("s_add_u32", T1, T1, S_ORG)
    g.salu("s_max_i32", S_XB[0], T1, 0)
    g.salu("s_min_i32", S_XB[0], S_XB[0], 111 * 172032)
    g.salu("s_add_u32", S_XB[0], S_XB[0], TH)
    g.salu("s_add_u32", T1, T1, TH)
    for T in range(1, 5):
        g.salu("s_lshl2_add_u32", T1, S_RP, T1)
        g.salu("s_mov_b32", S_XB[T], T1)
    g.salu("s_mul_i32", T0, T0, 768)
    g.salu("s_add_u32", S_ORG, S_ORG, T0)
    g.salu("s_add_u32", S_ORG, S_ORG, LAT)
    g.salu("s_mul_i32", S_XL, S_W, ROW)
    g.salu("s_mul_i32", S_STG, S_W, STGW)
    g.salu("s_add_u32", S_STG, S_STG, STG)
    g.salu("s_mul_i32", S_96, S_W, 96)
    g.salu("s_mul_i32", S_EH, S_W, EHS)
    g.salu("s_add_u32", S_EH, S_EH, EB)
    g.salu("s_mul_i32", T0, S_W, 338)
    g.salu("s_add_u32", S_RB, S_RB, T0)
    g.salu("s_mov_b32", S_C, f32bits((48 ** -0.5) * LOG2E))
    g.salu("s_mov_b32", S_C2, f32bits((48 ** -0.5) * LOG2E) - (1 << 23))
    consts_early(g)
    g.p.build(inorder=True)
    s.run(g.p)
    s.raw("    s_waitcnt lgkmcnt(0)")


def gen():
    s = Sched()
    prologue(s)
    nst = [1]

    def stampfn(sc, op):
        k = nst[0]
        nst[0] += 1
        sc.raw(f"    s_memtime s[{70 + 2 * k}:{71 + 2 * k}]")

    if FORCE_SAFE:
        s.raw("    s_branch L_safe2")
    g = body(False)
    if PROF and PROF != "1":
        want = PROF.split(",")
        for o in g.p.ops:
            o.stamp = None
        if PROF[0] == "@":
            s.mstamps = {int(want[0][1:]) + i * int(want[1]) for i in range(13)}
            want = []
        for w in want:
            t, k = (w.split(":") + ["mfma"])[:2]
            last = t.endswith("$")
            t = t.rstrip("$")
            c = [o for o in g.p.ops if o.tag == t and o.kind == k]
            c[-1 if last else 0].stamp = w
    g.p.build()
    s.run(g.p, stampfn if PROF else None)
    sys.stderr.write(f"fast: model cycles {s.t} mfma {s.nmf} ({16 * s.nmf}) stats {s.stats}\n")
    sys.stderr.write("marks: " + " ".join(f"{n}@{t}/{16 * m}" for n, t, m in s.marks) + "\n")
    sys.stderr.write("smarks: " + " ".join(str(t) for t in s.smarks) + "\n")
    if PROF:
        k = nst[0]
        s.raw(f"    s_memtime s[{70 + 2 * k}:{71 + 2 * k}]")
        s.raw("    s_waitcnt vmcnt(0)")
        s.raw(f"    s_memtime s[{72 + 2 * k}:{73 + 2 * k}]")
        s.raw("    s_waitcnt lgkmcnt(0)")
    if EXFIL:
        e = int(EXFIL)
        e = e if e >= 0 else k + 2 + e
        s.raw(f"    s_sub_u32 s50, s{70 + 2 * e}, s70")
        s.raw("    s_mul_hi_u32 s50, s50, 0x1999999a")
        s.raw("    s_add_u32 s50, s50, s100")
        s.raw("    s_add_u32 s50, s50, 4000")
        s.raw("L_spin:")
        s.raw("    s_memrealtime s[98:99]")
        s.raw("    s_waitcnt lgkmcnt(0)")
        s.raw("    s_sub_u32 s51, s50, s98")
        s.raw("    s_cmp_gt_i32 s51, 0")
        s.raw("    s_cbranch_scc1 L_spin")
    elif PROF:
        s.raw("    s_nop 7")
        for i in range(k + 2):
            s.raw(f"    v_mov_b32 v{i}, s{70 + 2 * i}")
        s.raw("    s_lshl_b32 s50, s2, 2")
        s.raw(f"    s_add_u32 s50, s50, {S_W}")
        s.raw("    s_lshl_b32 s50, s50, 6")
        s.raw("    s_add_u32 s50, s50, 0x100000")
        s.raw("    v_mov_b32 v20, s50")
        for i in range(4):
            s.raw(f"    buffer_store_dwordx4 v[{4 * i}:{4 * i + 3}], v20, s[{SWS}:{SWS + 3}], 0 offen offset:{16 * i}")
    s.raw("    s_nop 4")
    s.raw(f"    s_cmp_lg_u32 {S_BAD}, 0")
    s.raw("    s_cbranch_scc1 L_safe")
    s.raw("L_exit:")
    s.raw("    s_endpgm")
    s.raw("L_safe:")
    s.raw("    s_waitcnt vmcnt(0) lgkmcnt(0)")
    s.raw("    s_nop 7")
    s.raw("    s_barrier")
    s2 = Sched()
    g = G()
    consts_early(g)
    g.p.build(inorder=True)
    s2.run(g.p)
    s2.raw("L_safe2:")
    g = body(True)
    g.p.build()
    s2.run(g.p)
    s2.raw("    s_endpgm")
    sys.stderr.write(f"safe: model cycles {s2.t} mfma {s2.nmf} stats {s2.stats}\n")

    head = f"""; Fused DiNAT neighborhood attention (QKV proj + 7x7 dilated NA + out proj), one 14x14 query tile per workgroup,
; @launch grid=(256,1,1) block=(256,1,1) lds={LDS_TOTAL}
.amdgcn_target "amdgcn-amd-amdhsa--gfx950"
.text
.globl {NAME}_kernel
.p2align 8
.type {NAME}_kernel,@function
{NAME}_kernel:
"""
    tail = f""".section .rodata,"a"
.p2align 6
.amdhsa_kernel {NAME}_kernel
  .amdhsa_next_free_vgpr 512
  .amdhsa_next_free_sgpr 102
  .amdhsa_accum_offset 256
  .amdhsa_group_segment_fixed_size 0
  .amdhsa_kernarg_size 56
  .amdhsa_user_sgpr_count 2
  .amdhsa_user_sgpr_kernarg_segment_ptr 1
  .amdhsa_system_sgpr_workgroup_id_x 1
.end_amdhsa_kernel
"""
    return head + s.text() + s2.text() + tail


if __name__ == "__main__":
    out = sys.argv[1] if len(sys.argv) > 1 else "k8.s"
    open(out, "w").write(gen())
```

```python
import copy
import math
import os
import random
import struct
import sys

sys.path.insert(0, os.path.dirname(os.path.abspath(__file__)))
from sched import Op, Prog, Sched, V, A, rs

NAME = "standalone__neighborhood_dinat__vision"
PROF = os.environ.get("PROF")
STFLAG = os.environ.get("STFLAG", " nt")
FORCE_SAFE = os.environ.get("FORCE_SAFE")
FLIPODD = int(os.environ.get("FLIPODD", 1))
Q_GAP = int(os.environ.get("Q_GAP", 110))
SPF = int(os.environ.get("SPF", 0))
HOP = int(os.environ.get("HOP", 1300))
RT = os.environ.get("RT")
MAP = int(os.environ.get("MAP", 0))
TLBW = int(os.environ.get("TLBW", 0))
ABL = os.environ.get("ABL", "")
X16 = os.environ.get("X16", "").split(",")
CFLIP = int(os.environ.get("CFLIP", 0))
C_NB = int(os.environ.get("C_NB", 2500))
EXFIL = os.environ.get("EXFIL")
ST_GAP = int(os.environ.get("ST_GAP", 72))
X_LAT2 = int(os.environ.get("X_LAT2", 2000))
X_LAT = int(os.environ.get("X_LAT", 800))

ROW = 7680
STG = 92160
STGW = 12288
NPIECE = 4
SP = 122880
SLOT = 6144
OP = 384
MID = 30720
DUMMY = 142848
FLAG = 143360
NEGB = 145344
EB = NEGB + 512
ERP = 448
EHS = 4480
LDS_TOTAL = 163840

VB = 0
KB = 90
NK = 13
QB = 168
PB = 180
SB = 196
NS = int(os.environ.get("NS", 4))
OB = 212
ACCB = 228
NACC = 3
KX = (240, 241)
QX = (242, 243)
EA = (244, 245, 246)
OW, MX, SWA, ST0, ST1 = 247, 248, 249, 250, 251
RB0, RB1, TP0, TP1 = 252, 253, 254, 255
TA0, TA1 = OB + 13, OB + 14
OR = QX
OW2 = ST1
WT = (SWA, ST0)
XD = (168, 169, 170, 171)
WD = (172, 173, 174)
WDO = (RB0, RB1, ST1)
WK, WV, WQ = 0, 72, 144
XR = 216
NXR = int(os.environ.get("NXR", 8))
ONES = 248
STASH = 252

SX, SW, SWO, SRPB, SOUT, SWS = 4, 8, 12, 16, 20, 24
S_W, S_STG, S_RP, S_CP, S_ORG, S_BR, S_BC, S_FR, S_FC, S_EH, S_C, S_96 = [f"s{i}" for i in range(28, 40)]
S_XB = [f"s{i}" for i in range(40, 45)]
S_XG = "s45"
S_XL = "s46"
S_BAD = "s47"
S_RB = "s48"
S_RS = "s49"
S_C2 = "s3"


def f32bits(x):
    return struct.unpack("<I", struct.pack("<f", x))[0]


NEG = f32bits(-1e30)
LOG2E = math.log2(math.e)


def isreg(x):
    return isinstance(x, str) and (x in ("vcc", "m0", "scc") or (x[0] in "vas" and x[1:].isdigit()))


def fmt(x):
    if isinstance(x, int):
        return str(x) if -16 <= x <= 64 else hex(x & 0xFFFFFFFF)
    return x


class G:
    def __init__(self):
        self.p = Prog()
        self.rank = 1
        self.tag = ""
        self.st = 0
        self.m0 = None
        self.mem = {}
        self.nb = 0

    def content(self, lds):
        out = []
        for e in lds:
            if len(e) == 7:
                for a in range(e[0] >> 7, (e[1] + 127) >> 7):
                    if e[2] == "w":
                        self.mem[a] = e[6]
                    else:
                        assert self.mem.get(a) in e[6], f"{self.tag}: LDS {a << 7} holds {self.mem.get(a)}, want {e[6]}"
            out.append(e[:6])
        return out

    def add(self, text, kind, rd=(), wr=(), **kw):
        if kw.get("lds"):
            kw["lds"] = self.content(kw["lds"])
        kw.setdefault("rank", self.rank)
        kw.setdefault("nb", self.nb)
        return self.p.add(Op(text, kind, rd, wr, tag=self.tag, **kw))

    def valu(self, op, d, *src, kind="valu", **kw):
        d = f"v{d}" if isinstance(d, int) else d
        rd = [s for s in src if isreg(s)]
        return self.add(f"{op} {d}, " + ", ".join(fmt(s) for s in src), kind, rd, [d], **kw)

    def cmp(self, op, a, b):
        return self.add(f"{op} vcc, {fmt(a)}, {fmt(b)}", "valu", [s for s in (a, b) if isreg(s)], ["vcc"])

    def cnd(self, d, f, t):
        return self.add(f"v_cndmask_b32 v{d}, {fmt(f)}, {fmt(t)}, vcc", "valu",
                        [s for s in (f, t) if isreg(s)] + ["vcc"], [f"v{d}"])

    def mask(self, fn):
        m = sum(1 << l for l in range(64) if fn(l & 15, l >> 4))
        self.add(f"s_mov_b32 vcc_lo, {hex(m & 0xFFFFFFFF)}", "salu", [], ["vcc"])
        self.add(f"s_mov_b32 vcc_hi, {hex(m >> 32)}", "salu", ["vcc"], ["vcc"])

    def cndk(self, d, k, t):
        self.valu("v_add_u32", d, -k, t)
        self.cnd(d, 0, f"v{d}")
        self.valu("v_add_u32", d, k, f"v{d}")

    def salu(self, op, d, *src, **kw):
        rd = [s for s in src if isreg(s)]
        wr = [d] if d else []
        return self.add(f"{op} " + ", ".join(fmt(s) for s in ([d] if d else []) + list(src)), "salu", rd, wr, **kw)

    def stmp(self):
        self.st = (self.st + 1) % 7
        return f"s{51 + self.st}"

    def mfma(self, d, a, b, c, **kw):
        op = "v_mfma_f32_16x16x32_bf16" if len(a) == 4 else "v_mfma_f32_16x16x16_bf16"
        rd = list(a) + list(b) + (list(c) if c else [])
        return self.add(f"{op} {rs(d)}, {rs(a)}, {rs(b)}, {rs(c) if c else '0'}", "mfma", rd, d,
                        srcc=tuple(c) if c else None, mop=op, size=len(a), **kw)

    def dsr(self, op, d, addr, off, lds, **kw):
        assert 0 <= off < 65536, off
        return self.add(f"{op} {rs(d)}, v{addr} offset:{off}", "dsr", [f"v{addr}"], d, lds=lds, **kw)

    def dsw(self, op, addr, src, off, lds, **kw):
        assert 0 <= off < 65536, off
        return self.add(f"{op} v{addr}, {rs(src)} offset:{off}", "dsw", [f"v{addr}"] + list(src), [], lds=lds,
                        size=4 * len(src), **kw)

    def srd(self, s):
        return [f"s{s + i}" for i in range(4)]

    def dma(self, voff, srd, soff, lds, m0, off=0, **kw):
        if self.m0 != m0:
            self.salu("s_add_u32", "m0", m0[0], m0[1])
            self.m0 = m0
        o = f" offset:{off}" if off else ""
        return self.add(f"buffer_load_dwordx4 v{voff}, s[{srd}:{srd + 3}], {soff} offen{o} lds", "dma",
                        [f"v{voff}", "m0"] + self.srd(srd) + ([soff] if isreg(soff) else []), ["dmo"], lds=lds,
                        size=16, **kw)

    def vld(self, op, d, voff, srd, soff, off=0, size=16, **kw):
        o = f" offset:{off}" if off else ""
        return self.add(f"{op} {rs(d)}, v{voff}, s[{srd}:{srd + 3}], {soff} offen{o}", "vld",
                        [f"v{voff}"] + self.srd(srd) + ([soff] if isreg(soff) else []), d, size=size, **kw)

    def vst(self, op, src, voff, srd, soff, off=0, flags="", **kw):
        o = f" offset:{off}" if off else ""
        return self.add(f"{op} {rs(src)}, v{voff}, s[{srd}:{srd + 3}], {soff} offen{o}{flags}", "vst",
                        [f"v{voff}"] + list(src) + self.srd(srd) + ([soff] if isreg(soff) else []), [],
                        size=4 * len(src), **kw)

    def bar(self, name):
        o = self.add("s_barrier", "bar", rank=0)
        o.tag = name
        o.stamp = name
        return o

    def lane(self, d):
        self.valu("v_mbcnt_lo_u32_b32", d, -1, 0)
        self.valu("v_mbcnt_hi_u32_b32", d, -1, f"v{d}")


def v(i):
    return f"v{i}"


def xrow(r):
    return (r & 15) * ROW


def xrange_(r0, r1, c0, c1):
    return [(xrow(r) + 384 * c0, xrow(r) + 384 * (c1 + 1), "r", None, 0, 0, (f"x{r >> 2}",)) for r in range(r0, r1 + 1)]


def xd_calc(g, j, u0):
    u = "v2"
    if u0:
        g.valu("v_add_u32", 8, u0, "v2")
        u = "v8"
    g.valu("v_mul_u32_u24", 8, 11, u)
    g.valu("v_bfe_u32", 9, "v8", 6, 1)
    g.valu("v_lshrrev_b32", 8, 5, "v8")
    g.valu("v_xor_b32", 9, "v3", "v9")
    g.valu("v_mad_i32_i24", 8, "v8", "s50", "v4")
    g.valu("v_lshl_add_u32", XD[j], "v9", 4, "v8")


def consts_early(g):
    g.lane(1)
    g.salu("s_lshl_b32", "s51", S_W, 1)
    g.salu("s_add_u32", "s50", S_CP, -384)
    g.salu("s_mul_i32", "s52", S_FC, 7424)
    g.valu("v_lshrrev_b32", 2, 3, "v1")
    g.valu("v_and_b32", 3, 7, "v1")
    g.valu("v_xor_b32", 3, "s51", "v3")
    g.valu("v_lshl_add_u32", 4, "v2", 7, "s52")
    for j in range(3):
        xd_calc(g, j, 8 * j)
    g.salu("s_movk_i32", "s53", 1152)
    g.salu("s_movk_i32", "s54", "-96")
    g.valu("v_lshrrev_b32", 10, 1, "v1")
    g.valu("v_lshlrev_b32", 12, 4, "v1")
    for j in range(3):
        u = "v10"
        if j:
            g.valu("v_add_u32", 8, 32 * j, "v10")
            u = "v8"
        g.valu("v_mul_u32_u24", 8, 43, u)
        g.valu("v_lshrrev_b32", 9, 8, "v8")
        g.valu("v_lshrrev_b32", 8, 7, "v8")
        g.valu("v_and_b32", 9, 4, "v9")
        g.valu("v_xor_b32", 9, "v8", "v9")
        g.valu("v_mad_i32_i24", 8, "v8", "s54", "v12")
        g.valu("v_mad_u32_u24", WD[j], "v9", "s53", "v8")


def body(safe):
    g = G()
    R_EPI, R_A, R_H, R_BG = -1, 1, 1, 2

    def xdma(T):
        for _ in xdma_g(T, range(8), True):
            pass

    def xdma_g(T, js, stash=False):
        lo = xrow(4 * T)
        sok = {0: S_XB[T]}
        for j in js:
            g.tag = f"xdma{T}"
            g.rank = R_H if stash else -2
            k, rj = (j // 3, j % 3) if j < 7 else (2, 3)
            if k not in sok:
                sok[k] = f"s{58 + (k & 1)}"
                if k == 1:
                    g.salu("s_add_u32", sok[k], S_XB[T], S_XG)
                else:
                    g.salu("s_lshl1_add_u32", sok[k], S_XG, S_XB[T])
            so = sok[k]
            reg = XD[rj]
            off = 1024 * rj if rj < 3 else 512
            m0 = lo + 3072 * k
            if stash:
                reg = (TP0, TP1)[j & 1]
                g.valu("v_accvgpr_read_b32", reg, f"a{STASH + rj}")
            elif T == 0 and k == 0:
                reg = 5 + rj
                st = g.stmp()
                g.salu("s_add_u32", st, S_XB[0], off)
                g.valu("v_add_u32", reg, st, v(XD[rj]))
                g.valu("v_max_i32", reg, 0, v(reg))
                so, m0, off = "0", m0 + off, 0
            b0 = 3072 * k + (1024 * rj if rj < 3 else 512)
            u = 10000 * T + 1024 * j
            o = g.dma(reg, SX, so, [(lo + r * ROW + b0, lo + r * ROW + b0 + 1024, "w", "xd", u, u + 1024, f"x{T}") for r in range(4)],
                      (S_XL, m0), off)
            if str(T) in os.environ.get("XNT", ""):
                o.text = o.text.replace(" lds", os.environ.get("XFL", " nt") + " lds")
            o.lat = X_LAT if T < 2 or (j >= 6 and T == 2) else X_LAT2
            yield o

    pc = [0]

    def stg(mat, sl, rw, lo, hi):
        if mat < 3:
            return [(STG, STG + 4 * STGW, rw, "stg", sl * 3072 + lo, sl * 3072 + hi, "stg" if rw == "w" else ("stg",))]
        return [(12 * ROW, 16 * ROW, rw, "stg2", sl * 3072 + lo, sl * 3072 + hi, "st2" if rw == "w" else ("st2",))]

    def wdma_g():
        for n, (mat, p) in enumerate(wseq):
            if mat == 3 and p == 0:
                occ.clear()
                pc[0] = 0
            sl = pc[0] % (NPIECE if mat < 3 else 2)
            pc[0] += 1
            if sl in occ:
                w_read_upto(occ[sl] + 1)
            occ[sl] = n
            wslots[(mat, p)] = sl
            so = f"s{60 + n % 4}"
            for j in range(3):
                g.tag = f"wdma{mat}.{p}"
                g.rank = -2
                if j == 0:
                    if mat < 3:
                        g.salu("s_add_u32", so, S_96, p * 32 * 1152 + 384 * mat)
                    else:
                        g.salu("s_lshl_b32", so, S_W, 5)
                        g.salu("s_add_u32", so, so, (48 * (p & 1) + 16 * (p >> 1)) * 384)
                m0 = (S_STG, sl * 3072) if mat < 3 else (S_XL, 12 * ROW + sl * 3072)
                o = g.dma((WD if mat < 3 else WDO)[j], SW if mat < 3 else SWO, so,
                          stg(mat, sl, "w", 1024 * j, 1024 * j + 1024), m0, 1024 * j)
                if mat == 0:
                    o.gap = Q_GAP
                yield o

    occ = {}

    def wpiece_read(mat, p, sl):
        g.tag = f"wrd{mat}.{p}"
        g.rank = -1
        for ct in range(3):
            d = A({0: WQ, 1: WK, 2: WV, 3: WQ}[mat] + 4 * (ct * 6 + p), 4)
            for half in range(2):
                g.dsr("ds_read_b64_tr_b16", d[2 * half:2 * half + 2], WT[half], sl * 3072 + ct * 32,
                      stg(mat, sl, "r", 0, 3072))

    wseq = [(m, p) for m in (1, 2, 0, 3) for p in range(6)]
    wslots = {}
    wi = [0]

    def w_read_upto(n):
        while wi[0] < n:
            m, p = wseq[wi[0]]
            wpiece_read(m, p, wslots[(m, p)])
            wi[0] += 1

    def wo_consts(js, t):
        g.tag = "woc"
        g.lane(t[0])
        for j in js:
            d = WDO[j]
            g.valu("v_lshrrev_b32", t[1], 1, v(t[0]))
            g.valu("v_add_u32", t[1], 32 * j, v(t[1]))
            g.valu("v_mul_u32_u24", t[2], 43, v(t[1]))
            g.valu("v_lshrrev_b32", t[3], 8, v(t[2]))
            g.valu("v_lshrrev_b32", t[2], 7, v(t[2]))
            g.valu("v_mad_i32_i24", t[1], v(t[2]), -3, v(t[1]))
            g.valu("v_and_b32", t[3], 4, v(t[3]))
            g.valu("v_xor_b32", t[2], v(t[2]), v(t[3]))
            g.valu("v_and_b32", t[3], 4, v(t[2]))
            g.valu("v_mul_u32_u24", d, 24, v(t[3]))
            g.valu("v_lshrrev_b32", t[3], 3, v(t[2]))
            g.valu("v_lshl_add_u32", d, v(t[3]), 2, v(d))
            g.valu("v_and_or_b32", d, v(t[2]), 3, v(d))
            g.valu("v_mad_u32_u24", d, v(d), 3, v(t[1]))
            g.valu("v_and_b32", t[3], 1, v(t[0]))
            g.valu("v_lshl_add_u32", d, v(d), 3, v(t[3]))
            g.valu("v_lshlrev_b32", d, 4, v(d))
            if j:
                g.valu("v_add_u32", d, -1024 * j, v(d))

    def xall():
        if CFLIP:
            for T, js in ((1, (0, 1, 2)), (0, (0, 1, 2)), (0, (3, 4, 5)), (1, (3, 4, 5))):
                yield from xdma_g(T, js)
        else:
            yield from xdma_g(0, (3, 4, 5, 0, 1, 2))
            yield from xdma_g(1, range(6))
        if not os.environ.get("XR0"):
            for T in range(2):
                yield from xdma_g(T, (6, 7))
            yield from xdma_g(2, range(8))
            return
        yield from xdma_g(2, range(6))
        for T in range(3):
            yield from xdma_g(T, (6, 7))

    xg, wg = xall(), wdma_g()

    def rpb_dma():
        g.tag = "rpb"
        g.rank = -2
        g.salu("s_and_b32", "s65", S_RB, 0xFFF0)
        g.dma(12, SRPB, "s65", [(EB, LDS_TOTAL, "w", "ew", 7, 10)], (S_EH, EHS - 1024))

    def plan(pat):
        for ch in pat:
            if ch == "x":
                next(xg)
            elif ch == "w":
                next(wg)
            elif ch == "r":
                rpb_dma()
            elif ch == "c" and not safe:
                g.add("global_load_dword v11, v0, s[68:69]", "vld", ["v0"], ["dmo"], size=8, rank=-2)
            elif ch in "po" and not safe:
                g.tag = "pf"
                g.rank = -2
                st = g.stmp()
                g.salu("s_lshr_b32", st, "s2", 3)
                g.salu("s_lshl2_add_u32", st, st, S_W)
                g.salu("s_mul_i32", st, st, 1728 if ch == "p" else 576)
                if ch == "p":
                    g.valu("v_lshlrev_b32", 10, 5, "v1")
                o = g.vld("buffer_load_dword", V(11), 10 if ch == "p" else 12, SW if ch == "p" else SWO, st, size=8)
                o.wr = {"dmo"} if ch == "p" else {"dmo", "v11"}

    PLAN = os.environ.get("PLAN", "xwxwxwxxxwww|wwwxxxwwwxxxwwwwwwro" + 18 * "w" + 12 * "x" + 18 * "w")
    assert PLAN.count("x") == 24 and PLAN.count("w") == 54
    n0 = len(g.p.ops)
    plan(PLAN.split("|")[0])
    for o in g.p.ops[n0:]:
        o.gap = 4
        o.lat = int(os.environ.get("LAT0", 800))
    if not safe:
        scalars2(g)
        if HOP:
            t = ["s_mov_b64 exec, 0"]
            for w in range(3):
                t += [f"s_cmp_eq_u32 {S_W}, {w}", f"s_cbranch_scc1 L_h{w + 1}"]
            t += ["s_branch L_h4", "L_hback:", "s_mov_b64 exec, -1"]
            g.tag = "hop"
            g.add("\n    ".join(t), "salu", {S_EH}, {"hop"}, rank=3, nb=HOP)

    g.tag = "consts"
    g.rank = 0
    L15, GG, QR, QC = 13, 14, 15, 16
    g.valu("v_and_b32", L15, 15, "v1")
    g.valu("v_lshrrev_b32", GG, 4, "v1")
    g.valu("v_lshrrev_b32", QR, 2, v(L15))
    g.valu("v_and_b32", QC, 3, v(L15))
    g.valu("v_and_b32", 17, 1, v(GG))
    g.valu("v_lshl_add_u32", 18, v(GG), 3, v(QR))
    for half in range(2):
        g.valu("v_xor_b32", 19, half, "v17")
        g.valu("v_lshl_add_u32", 19, "v19", 2, "v18")
        g.valu("v_mul_u32_u24", 19, 96, "v19")
        g.valu("v_lshl_add_u32", 19, v(QC), 3, "v19")
        g.valu("v_add_u32", WT[half], S_STG, "v19")

    def xaddr(dst, r, c, gg, t):
        g.valu("v_and_b32", t, 3, v(r))
        g.valu("v_mul_u32_u24", r, ROW, v(r))
        g.valu("v_lshlrev_b32", t, 1, v(t))
        g.valu("v_bfe_u32", dst[1], v(c), 1, 1)
        g.valu("v_or_b32", t, v(t), v(dst[1]))
        g.valu("v_xor_b32", t, v(t), v(gg))
        g.valu("v_lshl_add_u32", r, v(t), 4, v(r))
        g.valu("v_mul_u32_u24", t, 384, v(c))
        g.valu("v_add_u32", dst[0], v(r), v(t))
        g.valu("v_xor_b32", dst[1], 64, v(dst[0]))

    g.valu("v_mov_b32", 17, v(QR))
    xaddr(KX, 17, QC, GG, 18)
    g.rank = R_BG
    g.nb = C_NB
    g.salu("s_add_u32", "s50", S_CP, -384)
    xd_calc(g, 3, 4)
    wo_consts((0, 1), (67, 68, 69, 70))
    g.tag = "consts"
    g.valu("v_add_u32", 17, 3, v(QR))
    g.valu("v_add_u32", 19, 3, v(QC))
    xaddr(QX, 17, 19, GG, 18)
    for j in range(4):
        g.valu("v_accvgpr_write_b32", f"a{STASH + j}", v(XD[j]))
    g.valu("v_mov_b32", 17, 0x3F803F80)
    for j in range(4):
        g.valu("v_accvgpr_write_b32", f"a{ONES + j}", "v17")
    g.valu("v_mov_b32", MX, 0)
    g.salu("s_and_b32", "s66", S_W, 1)
    g.salu("s_lshl_b32", "s66", "s66", 2)
    g.salu("s_lshr_b32", "s67", S_W, 1)
    g.salu("s_lshl_b32", "s67", "s67", 3)
    g.valu("v_lshrrev_b32", 18, 1, v(L15))
    g.valu("v_xor_b32", 18, v(GG), "v18")
    g.valu("v_xor_b32", 18, "s66", "v18")
    g.valu("v_mul_u32_u24", 17, OP, v(L15))
    g.valu("v_lshl_add_u32", 17, "v18", 4, "v17")
    g.valu("v_add_u32", 17, "s67", "v17")
    g.valu("v_add_u32", OW, MID, "v17")
    g.valu("v_add_u32", OW2, SP, "v17")

    def ea_generic(first, qr, qc, gg, t0, t1):
        g.valu("v_sub_u32", t0, v(gg), v(qr))
        g.valu("v_mul_i32_i24", t0, ERP, v(t0))
        g.valu("v_lshlrev_b32", t1, 4, v(qc))
        g.valu("v_sub_u32", t0, v(t0), v(t1))
        g.valu("v_add_u32", t0, S_EH, v(t0))
        if first:
            g.valu("v_max_u32", t1, S_BR, v(qr))
            g.valu("v_sub_u32", t1, v(gg), v(t1))
        else:
            g.valu("v_sub_u32", t1, v(gg), v(qr))
        for rel in range(3):
            g.valu("v_add_u32", EA[rel], 4 * rel, v(t1))
            g.cmp("v_cmp_gt_u32", 7, v(EA[rel]))
            g.valu("v_add_u32", EA[rel], 48 + 4 * rel * ERP - NEGB, v(t0))
            g.cnd(EA[rel], 0, v(EA[rel]))
            g.valu("v_add_u32", EA[rel], NEGB, v(EA[rel]))

    ea_generic(True, QR, QC, GG, 17, 18)

    g.tag = "etab"
    g.rank = R_BG
    EV, EVO, EM, EAD, EW = 30, (50, 51), (52, 53), (60, 61), 62
    g.valu("v_min_u32", 20, 55, "v1")
    g.valu("v_lshlrev_b32", EW, 3, "v20")
    g.salu("s_mul_i32", "s64", S_FR, 9 * ERP)
    g.salu("s_add_u32", "s64", "s64", S_EH)
    g.valu("v_add_u32", EW, "s64", v(EW))
    g.valu("v_lshrrev_b32", 21, 1, "v20")
    g.valu("v_and_b32", 20, 1, "v20")
    g.valu("v_lshlrev_b32", 20, 1, "v20")
    g.valu("v_add_u32", 22, -12, "v21")
    g.cmp("v_cmp_lt_u32", 11, "v21")
    g.cnd(22, "v21", "v22")
    g.valu("v_mov_b32", 23, S_BC)
    g.cnd(23, 0, "v23")
    g.salu("s_lshl_b32", "s66", S_FC, 1)
    g.salu("s_sub_u32", "s66", 1, "s66")
    for jj in range(2):
        g.valu("v_add_u32", 63, jj, "v20")
        g.valu("v_add3_u32", 64, "v22", "v63", -6)
        g.valu("v_add_u32", 65, 3, "v64")
        g.valu("v_and_b32", 66, 12, "v22")
        g.valu("v_add3_u32", 66, "v66", "v63", -3)
        g.cmp("v_cmp_ne_u32", 0, "v23")
        g.cnd(65, "v65", "v66")
        g.cmp("v_cmp_gt_u32", 7, "v65")
        g.valu("v_mul_i32_i24", 64, "s66", "v64")
        g.valu("v_add_lshl_u32", 64, "v64", 6, 1)
        g.cnd(EVO[jj], 0, "v64")
        g.valu("v_mov_b32", 64, f32bits(LOG2E))
        g.cnd(EM[jj], 0, "v64")
        g.valu("v_mov_b32", 64, 0)
        g.valu("v_mov_b32", 65, NEG)
        g.cnd(EAD[jj], "v65", "v64")
    g.nb = 0
    plan(PLAN.split("|")[1])
    w_read_upto(18)
    g.tag = "etab"
    g.rank = R_BG
    g.nb = C_NB
    g.salu("s_and_b32", "s64", S_RB, 15)
    g.salu("s_add_u32", "s64", "s64", S_EH)
    for jj in range(2):
        g.valu("v_add_u32", EVO[jj], "s64", v(EVO[jj]))
    for i in range(10):
        for jj in range(2):
            g.dsr("ds_read_u16", V(EV + 2 * i + jj), EVO[jj], EHS - 1024 + 26 * i, [(EB, LDS_TOTAL, "r", "ew", 7, 10)],
                  nb=int(os.environ.get("E_NB", 4000)))
    for i in range(10):
        for jj in range(2):
            r = EV + 2 * i + jj
            g.valu("v_lshlrev_b32", r, 16, v(r))
            g.valu("v_fma_f32", r, v(r), v(EM[jj]), v(EAD[jj]))
        g.dsw("ds_write_b64", EW, V(EV + 2 * i, 2), 0, [(EB, LDS_TOTAL, "w", "ew", 0, 10)])
        g.valu("v_add_u32", EW, S_RS, v(EW))
    g.valu("v_mov_b32", 64, NEG)
    g.valu("v_mov_b32", 65, NEG)
    g.valu("v_lshlrev_b32", 63, 3, "v1")
    g.valu("v_add_u32", 63, NEGB, "v63")
    g.dsw("ds_write_b64", 63, V(64, 2), 0, [(NEGB, EB, "w", "ew", 20, 21)])
    g.nb = 0
    ELDS = [(NEGB, LDS_TOTAL, "r", "ew", 0, 100)]
    ELDSX = [(NEGB, LDS_TOTAL, "r", None, 0, 0)]

    xp = [0]
    ap = [0]
    base = {KX: 0, QX: 0}

    def rebase(regs, off, span=320):
        b = base[regs]
        if not (b <= off and off + span - b < 65536):
            nb = (off // 30720) * 30720
            g.rank = R_EPI
            for r in regs:
                g.valu("v_add_u32", r, nb - b, v(r))
            base[regs] = b = nb
        return off - b

    def xfrag(addr, off, lds):
        d = A(XR + 4 * (xp[0] % NXR), 4)
        xp[0] += 1
        g.dsr("ds_read_b128", d, addr, off, lds, rank=R_EPI)
        return d

    def xfrags(pair, off, lds):
        return [xfrag(pair[ks & 1], off + (ks >> 1) * 128, lds) for ks in range(6)]

    def acc():
        d = V(ACCB + 4 * (ap[0] % NACC), 4)
        ap[0] += 1
        return d

    def wf(wb, ct, ks):
        return A(wb + 4 * (ct * 6 + ks), 4)

    state = {"wo": False, "wa": False, "wd": False, "ea": 0, "qx": 0}
    vrow = {}
    kslot = {}
    kfree = list(range(NK))

    def cvt(d, a, b, rank=R_EPI):
        g.valu("v_cvt_pk_bf16_f32", d, a, b, rank=rank)

    def k_epi(r, c, ct, ac):
        kb = KB + 6 * kslot[(r, c)] + 2 * ct
        cvt(kb, ac[0], ac[1])
        cvt(kb + 1, ac[2], ac[3])

    def v_epi(r, c, ct, ac):
        vrow[(r % 3, c)] = r
        for m in range(2):
            cvt(VB + 30 * ct + (2 * c + m) * 3 + r % 3, ac[2 * m], ac[2 * m + 1])

    def mm(kind, ac, ct, ks, xf):
        c = ac if ks else None
        if kind == "K":
            g.mfma(ac, wf(WK, ct, ks), xf, c, rank=1)
        elif kind == "V":
            g.mfma(ac, xf, wf(WV, ct, ks), c, rank=1)
        else:
            g.mfma(ac, wf(WQ, ct, ks), xf, c, rank=1)

    def kv_tile(r, c, kinds="KV"):
        assert not pend
        g.tag = f"{kinds}{r}{c}"
        off = rebase(KX, xrow(4 * r) + 1536 * c)
        xf = xfrags(KX, off, xrange_(4 * r, 4 * r + 3, 4 * c, 4 * c + 3))
        if "K" in kinds:
            kslot[(r, c)] = kfree.pop(0)
        for kind in kinds:
            for ct in range(3):
                ac = acc()
                for ks in range(5 if "kv" in ABL else 6):
                    mm(kind, ac, ct, ks, xf[ks])
                (k_epi if kind == "K" else v_epi)(r, c, ct, ac)

    gfree = [PB + 4 * i for i in range(12)] + [ACCB + 4 * i for i in range(3)] + [KB + 48 + 4 * i for i in range(7)] \
        + [24, 54, 84]
    gall = [True]
    gacc = {}

    def group(kind, tiles, k0=0, k1=6):
        g.tag = f"g{kind}{tiles[0][0]}{tiles[0][1]}"
        if k0 == 0:
            for t in tiles:
                if kind == "K":
                    kslot[t] = kfree.pop(0)
                for ct in range(3):
                    gacc[(kind,) + t + (ct,)] = gfree.pop(0)
        for ks in range(k0, k1):
            for (r, c) in tiles:
                off = rebase(KX, xrow(4 * r) + 1536 * c)
                xf = xfrag(KX[ks & 1], off + (ks >> 1) * 128, xrange_(4 * r, 4 * r + 3, 4 * c, 4 * c + 3))
                for ct in range(3):
                    mm(kind, V(gacc[(kind, r, c, ct)], 4), ct, ks, xf)
        if k1 == 6:
            for (r, c) in tiles:
                for ct in range(3):
                    a = gacc.pop((kind, r, c, ct))
                    (k_epi if kind == "K" else v_epi)(r, c, ct, V(a, 4))
                    if gall[0] or PB <= a < ACCB:
                        gfree.append(a)

    slots = {"00": SP, "01": SP + SLOT, "02": SP + 2 * SLOT}
    for k, n in enumerate(("s01", "10", "11", "12", "20", "21", "22", "s2", "b1", "b2")):
        slots[n] = MID + k * SLOT

    def oc(n, rw, cid):
        return [(slots[n], slots[n] + SLOT, rw, "oc", slots[n], slots[n] + SLOT, cid)]

    def ow(n):
        return (OW2, slots[n] - SP) if slots[n] >= SP else (OW, slots[n] - MID)

    qreg = {}
    qp = [0]

    def qalloc(n):
        if QB + 6 * (qp[0] % 2) in qreg.values():
            qp[0] += 1
        assert QB + 6 * (qp[0] % 2) not in qreg.values(), "Q slot busy"
        qreg[n] = QB + 6 * (qp[0] % 2)
        qp[0] += 1
        return qreg[n]

    def lanebits(t):
        g.lane(t)

    def q_xf(n):
        g.rank = 0
        assert state["qx"] == (1 if n == "b2" else 0) and not pend
        state["qx"] = 1 if n[0] == "b" else 0
        if n[0] in "012":
            b, j = int(n[0]), int(n[1])
            off = rebase(QX, b * 4 * ROW + j * 1536)
            return xfrags(QX, off, xrange_(3 + 4 * b, 6 + 4 * b, 3 + 4 * j, 6 + 4 * j))
        if n == "s2":
            off = rebase(QX, 2 * 4 * ROW + 3 * 1536)
            return xfrags(QX, off, xrange_(11, 14, 15, 18))
        if n == "s01":
            off = rebase(QX, 3 * 1536, span=320)
            g.rank = 0
            g.valu("v_xor_b32", TP0, 16, v(QX[0]))
            g.valu("v_add_u32", TP0, 4 * ROW - 768, v(TP0))
            g.mask(lambda p, gg: p & 2)
            g.cnd(TP0, v(QX[0]), v(TP0))
            g.valu("v_xor_b32", TP1, 64, v(TP0))
            return xfrags((TP0, TP1), off, xrange_(3, 10, 15, 16))
        if n == "b1":
            g.valu("v_add_u32", QX[0], 12 * ROW - base[QX], v(QX[0]))
            g.valu("v_add_u32", QX[1], 10 * ROW + 1536 - base[QX], v(QX[1]))
            g.mask(lambda p, gg: p & 8)
            g.cnd(QX[0], v(QX[0]), v(QX[1]))
            g.valu("v_add_u32", QX[1], -16 * ROW, v(QX[0]))
            g.mask(lambda p, gg: p & 4)
            g.cnd(QX[0], v(QX[0]), v(QX[1]))
            g.valu("v_xor_b32", QX[1], 64, v(QX[0]))
            base[QX] = 0
        return xfrags(QX, 0 if n == "b1" else 8 * 384, xrange_(15, 16, 3, 18))

    pend = {}

    adone = []
    AORD = "00 01 02 s0 10 11 12 s1 20 21 22 s2 b1 b2".split()

    def q_reads(n):
        g.tag = f"Q{n}"
        pend[n] = q_xf(n)

    def q_blk(n, park=False, keep=True):
        g.tag = f"Q{n}"
        assert not state["wo"] and all(k == n for k in pend)
        xf = pend.pop(n) if n in pend else q_xf(n)
        qb = qalloc(n) if keep else None
        for ct in range(3):
            ac = acc()
            for ks in range(6):
                mm("Q", ac, ct, ks, xf[ks])
            for i in range(4):
                g.valu("v_mul_f32", ac[i], S_C2 if ct == 1 and n not in X16 else S_C, ac[i], rank=R_EPI)
            d = V(qb + 2 * ct, 2) if keep else ac[:2]
            cvt(d[0], ac[0], ac[1])
            cvt(d[1], ac[2], ac[3])
            if park and "park" in ABL:
                g.content(oc(n, "w", "q" + n))
            elif park:
                a, o = ow(n)
                g.dsw("ds_write_b64", a, d, o + 128 * ct, oc(n, "w", "q" + n), rank=R_EPI)

    def wo_dma():
        assert "02" in adone
        state["wd"] = True
        g.rank = 0
        wo_consts((2,), [int(x[1:]) for x in acc()])
        g.salu("s_mul_i32", "s66", S_W, ROW - STGW)
        for half in range(2):
            g.valu("v_add_u32", WT[half], "s66", v(WT[half]))
        plan(6 * "w")

    def wo_load():
        assert state["wd"]
        state["wo"] = True
        plan(12 * "w")
        w_read_upto(24)

    def out_addr():
        assert state["wo"]
        state["wa"] = True
        g.tag = "wo"
        g.rank = 0
        t = [int(x[1:]) for x in acc()]
        lanebits(t[0])
        g.valu("v_and_b32", t[1], 15, v(t[0]))
        g.valu("v_lshrrev_b32", t[0], 4, v(t[0]))
        g.valu("v_lshrrev_b32", t[2], 1, v(t[1]))
        g.valu("v_mul_u32_u24", t[3], OP, v(t[1]))
        g.valu("v_xor_b32", OR[1], v(t[0]), v(t[2]))
        g.valu("v_lshl_add_u32", OR[0], v(OR[1]), 4, v(t[3]))
        g.valu("v_xor_b32", OR[1], 64, v(OR[0]))
        base[OR] = 0
        g.salu("s_lshl_b32", "s66", S_W, 1)
        g.valu("v_lshrrev_b32", SWA, 1, v(t[0]))
        g.valu("v_or_b32", SWA, "s66", v(SWA))
        g.valu("v_mov_b32", RB1, v(SWA))
        g.valu("v_xor_b32", SWA, v(SWA), v(t[2]))
        g.valu("v_lshl_add_u32", SWA, v(SWA), 4, v(t[3]))
        g.valu("v_and_b32", t[3], 1, v(t[0]))
        g.valu("v_lshl_add_u32", SWA, v(t[3]), 3, v(SWA))
        base[(SWA,)] = 0
        g.salu("s_mul_i32", "s67", S_FC, 3)
        g.valu("v_xor_b32", ST0, "s67", v(t[0]))
        g.valu("v_mul_u32_u24", ST0, 768, v(ST0))
        g.salu("s_mul_i32", "s67", S_W, 4 * OP)
        g.salu("s_add_u32", "s67", "s67", 12 * ROW)
        g.valu("v_mul_u32_u24", t[0], OP, v(t[0]))
        g.valu("v_add_u32", t[0], "s67", v(t[0]))
        g.valu("v_lshlrev_b32", t[3], 3, v(t[3]))
        g.valu("v_xor_b32", RB0, v(t[1]), v(t[3]))
        g.valu("v_xor_b32", RB0, v(RB0), v(RB1))
        g.valu("v_lshl_add_u32", RB0, v(RB0), 4, v(t[0]))
        g.valu("v_xor_b32", RB1, v(RB1), v(t[2]))
        g.valu("v_lshl_add_u32", RB1, v(RB1), 4, v(t[0]))
        g.valu("v_and_b32", t[2], 1, v(t[1]))
        g.valu("v_lshl_add_u32", RB1, v(t[2]), 3, v(RB1))
        base[(RB0, RB1)] = 12 * ROW
        g.valu("v_lshl_add_u32", ST1, v(t[1]), 3, v(ST0))
        g.valu("v_xor_b32", t[1], v(t[1]), v(t[3]))
        g.valu("v_lshl_add_u32", ST0, v(t[1]), 4, v(ST0))

    def st_base(r0, c0, bottom=False):
        s0, s1 = g.stmp(), g.stmp()
        if bottom:
            g.salu("s_and_b32", s0, S_W, 1)
            g.salu("s_add_u32", s0, s0, r0)
            g.salu("s_lshr_b32", s1, S_W, 1)
            g.salu("s_lshl2_add_u32", s1, s1, c0)
            g.salu("s_mul_i32", s1, s1, S_CP)
        else:
            g.salu("s_add_u32", s0, S_W, r0)
            g.salu("s_mul_i32", s1, S_CP, c0)
        g.salu("s_mul_i32", s0, s0, S_RP)
        g.salu("s_add_u32", s0, s0, s1)
        g.salu("s_add_u32", s0, s0, S_ORG)
        return s0

    staged = []
    fb = [0]
    sring = [0]

    def flush():
        for n, sa in staged:
            g.tag = f"F{n}"
            g.rank = 0
            if n[0] in "012":
                parts = [(st_base(3 + 4 * int(n[0]), 3 + 4 * int(n[1])), None)]
            elif n == "s01":
                parts = [(st_base(3, 15), ("exec_hi", "0")), (st_base(7, 13), ("exec_lo", "0"))]
            elif n == "s2":
                parts = [(st_base(11, 15), ("exec_hi", "0"))]
            elif n == "b1":
                parts = [(st_base(15, 3, True), None)]
            else:
                sm = g.stmp()
                g.salu("s_lshr_b32", sm, S_W, 1)
                g.salu("s_sub_u32", sm, sm, 1)
                parts = [(st_base(15, 11, True), ("exec_hi", sm))]
            off = rebase((RB0, RB1), sa)
            lds = [(sa, sa + SLOT, "r", None, 0, 0, ("s" + n,))]
            d0, d1 = A(STASH, 4), V(TP0, 2)
            if sring[0] == 13:
                fb[0] = (fb[0] + 1) % 8
                d0, d1 = A(WK + 8 * fb[0], 4), A(WK + 8 * fb[0] + 4, 2)
            g.dsr("ds_read_b128", d0, RB0, off, lds, rank=0)
            g.dsr("ds_read_b64", d1, RB1, off + 256, lds, rank=0)
            for so, ex in parts:
                for o in (g.vst("buffer_store_dwordx4", d0, ST0, SOUT, so, flags=STFLAG, rank=0),
                          g.vst("buffer_store_dwordx2", d1, ST1, SOUT, so, off=256, flags=STFLAG, rank=0)):
                    if ex:
                        o.text = f"s_mov_b32 {ex[0]}, {ex[1]}\n    {o.text}\n    s_mov_b32 {ex[0]}, -1"
                        if isreg(ex[1]):
                            o.rd.add(ex[1])
        del staged[:]

    def o_blk(n):
        assert not pend
        g.tag = f"O{n}"
        off = rebase(OR, slots[n])
        assert state["wa"]
        xf = xfrags(OR, off, [(slots[n], slots[n] + SLOT, "r", None, 0, 0, ("os1" if n == "s01" else "o" + n,))])
        sa = 12 * ROW + SLOT * (sring[0] % 5)
        sring[0] += 1
        off = rebase((SWA,), sa)
        km = n in os.environ.get("OKM", "").split(",")
        if km:
            acs = [acc() for _ in range(3)]
            for ks in range(6):
                for ct in range(3):
                    mm("Q", acs[ct], ct, ks, xf[ks])
        for ct in range(3):
            ac = acs[ct] if km else acc()
            for ks in range(0 if km else 6):
                mm("Q", ac, ct, ks, xf[ks])
            cvt(ac[0], ac[0], ac[1])
            cvt(ac[1], ac[2], ac[3])
            g.dsw("ds_write_b64", SWA, ac[:2], off + 128 * ct,
                  [(sa, sa + SLOT, "w", "os", sa + ct, sa + ct + 1, "s" + n)], rank=R_EPI)
        staged.append((n, sa))

    sp = [0]
    pq = [0]
    pzero = set()

    def attn(n):
        g.tag = f"A{n}"
        g.rank = R_A
        qn = "s01" if n in ("s0", "s1") else n
        mask = None
        if n[0] in "012":
            b, j = int(n[0]), int(n[1])
            rows, cols = (b, b + 1, b + 2), [(j, 2), (j + 1, 2), (j + 2, 1)]
            eoff = 192 if j == 0 else 0
            frees = [(b, j)]
        elif n[0] == "s":
            b, j = int(n[1]), 3
            rows, cols = (b, b + 1, b + 2), [(3, 2), (4, 2)]
            eoff = 32 if n == "s1" else 0
            mask = {"s0": 0, "s1": 1}.get(n)
            frees = [(b, 3), (b, 4)]
        else:
            b, j = 3, (0 if n == "b1" else 2)
            rows = (3, 4)
            cols = [(0, 2), (1, 2), (2, 2), (3, 1)] if n == "b1" else [(2, 2), (3, 2), (4, 2)]
            eoff = 0
            frees = []
        t = [SB + 4 * (sp[0] % NS) + i for i in range(4)]
        R4 = 4 * ERP
        if n == "10":
            g.valu("v_mov_b32", t[0], NEGB)
            g.valu("v_add_u32", t[1], -R4, v(EA[1]))
            g.valu("v_add_u32", EA[2], R4, v(EA[1]))
            g.mask(lambda p, gg: gg - (p >> 2) == 3)
            g.cnd(EA[0], v(t[1]), v(EA[0]))
            g.cnd(EA[1], v(EA[1]), v(t[0]))
            g.mask(lambda p, gg: gg < (p >> 2))
            g.cnd(EA[0], v(EA[0]), v(t[0]))
            g.mask(lambda p, gg: gg - (p >> 2) > -2)
            g.cnd(EA[2], v(EA[2]), v(t[0]))
        if n == "b1":
            g.valu("v_mov_b32", t[0], NEGB)
            g.valu("v_add_u32", t[1], -R4, v(EA[1]))
            g.mask(lambda p, gg: gg < (p >> 2))
            g.cnd(t[1], v(EA[0]), v(t[1]))
            g.valu("v_add_u32", t[2], 192, v(t[1]))
            g.valu("v_add_u32", t[1], 2 * ERP - 64, v(t[1]))
            g.mask(lambda p, gg: p & 8)
            g.cnd(EA[0], v(t[2]), v(t[1]))
            g.valu("v_add_u32", EA[1], R4, v(EA[0]))
            g.mask(lambda p, gg: gg < ((p >> 2) & 1))
            g.cnd(EA[0], v(EA[0]), v(t[0]))
            g.mask(lambda p, gg: gg - ((p >> 2) & 1) == 3)
            g.cnd(EA[1], v(EA[1]), v(t[0]))
        if n == "b2":
            for rel in range(2):
                g.valu("v_add_u32", t[rel], -192, v(EA[rel]))
                g.mask(lambda p, gg: not (p & 8) and 0 <= 4 * rel + gg - ((p >> 2) & 1) <= 6)
                g.cnd(EA[rel], v(EA[rel]), v(t[rel]))
        if qn not in qreg:
            qb = qalloc(qn)
            a, o = ow(qn)
            for ct in range(3):
                g.dsr("ds_read_b64", V(qb + 2 * ct, 2), a, o + 128 * ct, oc(qn, "r", ("os0",) if n == "s1" else ("q" + n,)), rank=0)
        qb = qreg.pop(qn)
        vbase = 6 * j
        assert AORD[len(adone)] == n, "attention order"
        adone.append(n)
        for (c, nh) in cols:
            for r in rows:
                assert vrow.get((r % 3, c)) == r, f"V{r}{c} not live"
        tiles = [(r, c, nh) for (c, nh) in cols for r in rows]
        if n == "s1" and "s1" in ABL:
            tiles = tiles[:1]
        if n == "00" and os.environ.get("A00R"):
            tiles = [t_ for t_ in tiles if t_[0] < 2] + [t_ for t_ in tiles if t_[0] == 2]
        used = {(2 * c + m) * 3 + r % 3 - vbase for (r, c, nh) in tiles for m in range(nh)}
        nst = (max(used) >> 2) + 1

        scount = [0]

        def s_tile(r, c):
            s = V(SB + 4 * (sp[0] % NS), 4)
            sp[0] += 1
            g.dsr("ds_read_b128", s, EA[r - b], eoff + (c - j) * 64, ELDSX if n[0] == "b" else ELDS, rank=0)
            kb = KB + 6 * kslot[(r, c)]
            g.mfma(s, V(kb, 4), V(qb, 4), s, rank=0).wr.add(f"gate{n}.{scount[0]}")
            scount[0] += 1
            if qn in X16:
                g.mfma(s, V(kb + 4, 2), V(qb + 4, 2), s, rank=0)
            else:
                g.mfma(s, V(kb + 2, 4), V(qb + 2, 4), s, rank=0)
            return s

        if safe:
            first = True
            for (r, c, nh) in tiles:
                s = s_tile(r, c)
                for m in range(nh):
                    if first:
                        g.valu("v_max_f32", MX, s[0], s[1])
                        first = False
                    else:
                        g.valu("v_max3_f32", MX, v(MX), s[2 * m], s[2 * m + 1])
            for which in (16, 32):
                g.valu("v_mov_b32", TA0, v(MX))
                g.add(f"v_permlane{which}_swap_b32 v{MX}, v{TA0}", "perm", [v(MX), v(TA0)], [v(MX), v(TA0)])
                g.valu("v_max_f32", MX, v(MX), v(TA0))

        def preg(idx):
            return PB + 4 * ((pq[0] + (idx >> 2)) % 4) + (idx & 3)

        written = set()
        step = 0
        for (r, c, nh) in tiles:
            s = s_tile(r, c)
            for i in range(2 * nh):
                if safe:
                    g.valu("v_sub_f32", s[i], s[i], v(MX))
                g.valu("v_exp_f32", s[i], s[i], kind="trans")
            for m in range(nh):
                idx = (2 * c + m) * 3 + r % 3 - vbase
                cvt(preg(idx), s[2 * m], s[2 * m + 1], rank=R_A)
                pzero.discard(preg(idx))
                written.add(idx)
            while step < nst and all((i in written) or (i not in used) for i in range(4 * step, 4 * step + 4)):
                for i in range(4 * step, 4 * step + 4):
                    if i not in used and preg(i) not in pzero:
                        g.valu("v_mov_b32", preg(i), 0)
                        pzero.add(preg(i))
                pr = V(preg(4 * step), 4)
                for td in range(3):
                    o = V(OB + 4 * td, 4)
                    g.mfma(o, V(VB + 30 * td + vbase + 4 * step, 4), pr, o if step else None, rank=0)
                o = V(OB + 12, 4)
                if "sum" not in ABL or step == 0:
                    g.mfma(o, A(ONES, 4), pr, o if step else None, rank=0)
                step += 1
        assert step == nst
        pq[0] = (pq[0] + nst) % 4
        for t in frees:
            kfree.append(kslot.pop(t))
        g.rank = R_A
        g.valu("v_rcp_f32", TA0, v(OB + 12), kind="trans")
        if not safe:
            g.valu("v_max3_f32", MX, v(MX), v(OB + 12), v(TA0))
        a, off = ow(qn)
        if mask is not None:
            g.valu("v_mov_b32", TA1, DUMMY - off)
            g.mask(lambda p, gg: (p & 2) == 2 * mask)
            g.cnd(TA1, v(TA1), v(a))
            a = TA1
        for td in range(3):
            o = V(OB + 4 * td, 4)
            for i in range(4):
                if "mul" not in ABL:
                    g.valu("v_mul_f32", o[i], o[i], v(TA0))
            cvt(o[0], o[0], o[1], rank=R_A)
            cvt(o[1], o[2], o[3], rank=R_A)
            if n == "s0" and td == 0:
                g.content(oc(qn, "r", ("qs01",)))
            g.dsw("ds_write_b64", a, o[:2], off + 128 * td, oc(qn, "w", "o" + n)).wr.add(f"gate{n}.w{td}")

    def flag_write():
        assert len(adone) == 14
        state["fw"] = True
        if safe:
            return
        g.tag = "flag"
        g.rank = 0
        g.valu("v_mov_b32", TA1, f32bits(2.0 ** 60))
        g.cmp("v_cmp_gt_f32", v(MX), v(TA1))
        g.add("s_cmp_lg_u64 vcc, 0\n    s_cselect_b32 s66, 1, 0", "salu", ["vcc"], ["s66"])
        g.valu("v_mov_b32", TA0, "s66")
        g.salu("s_lshl2_add_u32", "s67", S_W, FLAG)
        g.valu("v_mov_b32", TA1, "s67")
        g.dsw("ds_write_b32", TA1, V(TA0), 0, [(FLAG, FLAG + 16, "w", "fl", 0, 1)])

    def flag_read():
        assert state.get("fw")
        if safe:
            return
        g.tag = "flagr"
        g.rank = R_BG
        g.valu("v_mov_b32", TA1, FLAG)
        s = V(SB, 4)
        g.dsr("ds_read_b128", s, TA1, 0, [(FLAG, FLAG + 16, "r", None, 0, 0)])
        g.valu("v_or3_b32", TA0, s[0], s[1], s[2])
        g.valu("v_or_b32", TA0, v(TA0), s[3])
        g.add(f"v_readfirstlane_b32 {S_BAD}, v{TA0}", "rfl", [v(TA0)], [S_BAD])

    PHA = "b1 K0:23:01 b1b K0:01:01 K0:0123:12 K0:0123:23 b2 K1:01:03 K0:0123:34 K1:01:34 b2b K1:23:04 K0:0123:45 " \
          "K1:0123:45 K0:0123:56 K1:0123:56 " + " ".join(f"V0:0123:{k}{k + 1} V1:0123:{k}{k + 1}" for k in range(6)) + " z b3"
    for tk in os.environ.get("PHA", PHA).split():
        if tk[0] == "b":
            g.bar(tk)
        elif tk == "z":
            gfree[:] = [a for a in gfree if PB <= a < ACCB]
            gall[0] = False
        else:
            f = tk.split(":")
            kr = f[2] if len(f) > 2 else "06"
            group(tk[0], [(int(tk[1]), int(c)) for c in f[1]], int(kr[0]), int(kr[1]))
    order = os.environ.get("ORDER", """
        T04 T14 b3b T20 T21 T22 Q00 Q01 b4 X3 A00 T23 bx Q02 A01 T24 Rs01 b5 A02 Ks01 Q10 As0 T31 T30 Q11 R12 b6 P12
        T32 P20 A10 P22 X4 T33 b7 Ps2 A11 P21 Pb1 T34 Rb2 b8 A12 WD Pb2 WO T41 As1 b9 T40 T42 A20 T43 WA A21
        O00<21.4 O02 T44 b10 O01 A22 As2 O11<21.0 O10 b11 Ab1 O12 O20<b1.1 b12 Ab2 O21 FW Os01 O22<b2.0 b13 Os2 b14
        Ob1<b2.w2 FR bx Ob2 b15""").split()

    def token(tk):
        c, n = tk[0], tk[1:]
        if tk == "WD":
            wo_dma()
        elif tk == "WO":
            wo_load()
        elif tk == "WA":
            out_addr()
        elif tk == "FL":
            flush()
        elif tk == "FW":
            flag_write()
        elif tk == "FR":
            flag_read()
        elif tk == "Ks01":
            q_blk("s01", park=True, keep=True)
        elif c == "b":
            g.bar(tk)
            flush()
        elif c == "X":
            xdma(int(n))
        elif c == "Q":
            q_blk(n)
        elif c == "P":
            q_blk(n, park=True, keep=False)
        elif c == "R":
            q_reads(n)
        elif c == "A":
            attn(n)
        elif c == "O":
            o_blk(n)
        elif c in "KVT":
            kv_tile(int(n[0]), int(n[1]), {"T": "KV"}.get(c, c))
        else:
            raise ValueError(tk)

    for tk in order:
        tk, _, gate = tk.partition("<")
        n0 = len(g.p.ops)
        token(tk)
        if gate:
            for o in g.p.ops[n0:]:
                if o.kind == "mfma" and o.srcc is None:
                    o.rd.add("gate" + gate)
    assert not staged and len(adone) == 14 and sring[0] == 13
    return g


def scalars2(g):
    h = G()
    TH, TW = "s64", "s65"
    if SPF == 2:
        for i in range(14):
            h.add(f"s_buffer_load_dword s47, s[{SW}:{SW + 3}], s66 offset:{128 * i}", "salu")
    h.salu("s_mov_b32", S_BR, 0)
    h.salu("s_add_u32", "s66", TH, 1)
    h.salu("s_and_b32", "s66", "s66", 6)
    h.salu("s_cselect_b32", S_BR, 0, 3)
    h.salu("s_add_u32", "s66", TW, 1)
    h.salu("s_and_b32", "s66", "s66", 6)
    h.salu("s_cselect_b32", S_BC, 0, 1)
    h.salu("s_cmp_lt_i32", None, S_RP, 0)
    h.salu("s_cselect_b32", S_FR, 1, 0)
    h.salu("s_cselect_b32", S_RS, -1, 1)
    h.salu("s_mul_i32", S_RS, S_RS, ERP)
    h.salu("s_cselect_b32", S_RB, 0, 78)
    h.salu("s_mul_i32", "s66", S_W, 338)
    h.salu("s_add_u32", S_RB, S_RB, "s66")
    for T in range(2, 5):
        h.salu("s_lshl2_add_u32", S_XB[T], S_RP, S_XB[T - 1])
    h.salu("s_mul_i32", "s66", S_FC, 7424 - 2304)
    h.salu("s_add_u32", S_ORG, S_ORG, "s66")
    h.salu("s_mul_i32", S_EH, S_W, EHS)
    h.salu("s_add_u32", S_EH, S_EH, EB)
    h.salu("s_mov_b32", S_C, f32bits((48 ** -0.5) * LOG2E))
    h.salu("s_mov_b32", S_C2, f32bits((48 ** -0.5) * LOG2E) - (1 << 23))
    for srd, size in ((SWO, 73728), (SRPB, 1352), (SOUT, 19267584), (SWS, 0x1000000)):
        h.salu("s_mov_b32", f"s{srd + 2}", size)
        h.salu("s_mov_b32", f"s{srd + 3}", 0x20000)
    if TLBW:
        h.add(f"s_buffer_load_dword s47, s[{SWO}:{SWO + 3}], 0", "salu")
        h.add(f"s_buffer_load_dword s47, s[{SRPB}:{SRPB + 3}], 0", "salu")
        for T in (1, 2, 3):
            h.add(f"s_buffer_load_dword s47, s[{SOUT}:{SOUT + 3}], {S_XB[T]}", "salu")
    rd, wr = set(), set()
    for o in h.p.ops:
        rd |= o.rd
        wr |= o.wr
    g.tag = "sc2"
    g.add("\n    ".join(o.text for o in h.p.ops), "salu", rd | {"dmo"}, wr, rank=0)


def prologue(s):
    s.raw("    s_cmpk_ge_u32 s2, 0x100")
    s.raw("    s_cbranch_scc1 L_exit")
    if PROF:
        s.raw("    s_memtime s[70:71]")
    if EXFIL or RT:
        s.raw("    s_memrealtime s[100:101]")
    for srd, p in ((SX, 0), (SW, 8), (SWO, 16), (SRPB, 24), (SOUT, 32)) + (((SWS, 48),) if PROF else ()):
        s.raw(f"    s_load_dwordx2 s[{srd}:{srd + 1}], s[0:1], {p}")
    g = G()
    TH, TW, T0, T1 = "s64", "s65", "s66", "s67"
    g.add("s_getpc_b64 s[68:69]", "salu")
    g.valu("v_lshrrev_b32", 4, 6, "v0")
    g.salu("s_bfe_u32", TW, "s2", 0x30003)
    g.add(f"v_readfirstlane_b32 {S_W}, v4", "rfl", ["v4"], [S_W])
    g.salu("s_lshl_b32", T0, TW, 13)
    g.valu("v_lshl_add_u32", 0, "v0", 5, T0)
    if "c" not in os.environ.get("PLAN", "") and not os.environ.get("NOCPF"):
        g.add("global_load_dword v11, v0, s[68:69]", "salu", ["v0"])
    if MAP == 0:
        g.salu("s_lshr_b32", T0, "s2", 6)
        g.salu("s_and_b32", T1, "s2", 1)
        g.salu("s_lshl2_add_u32", TH, T1, T0)
    else:
        g.salu("s_lshr_b32", T0, "s2", 7)
        g.salu("s_lshl1_add_u32", TH, "s2", T0)
        g.salu("s_add_u32", TH, TH, 1)
        g.salu("s_and_b32", TH, TH, 7)
    g.salu("s_mov_b32", S_RP, 172032)
    g.salu("s_mul_i32", T0, TH, 14)
    if FLIPODD:
        g.salu("s_bitcmp1_b32", None, TH, 0)
    else:
        g.salu("s_cmp_eq_u32", None, TH, 7)
    g.salu("s_cselect_b32", T1, 16, -3)
    g.salu("s_cselect_b32", S_FR, -1, 1)
    g.salu("s_add_u32", T0, T0, T1)
    g.salu("s_mul_i32", S_ORG, T0, S_RP)
    g.salu("s_mul_i32", S_XB[0], S_RP, 111)
    g.salu("s_mul_i32", S_RP, S_RP, S_FR)
    g.salu("s_mul_i32", T0, TW, 28)
    if CFLIP:
        g.salu("s_bitcmp1_b32", None, TW, 0)
    else:
        g.salu("s_cmp_eq_u32", None, TW, 7)
    g.salu("s_cselect_b32", S_FC, 1, 0)
    g.salu("s_cselect_b32", T1, 18, -6)
    g.salu("s_cselect_b32", S_CP, -3, 3)
    g.salu("s_add_u32", T0, T0, T1)
    g.salu("s_bfe_u32", T1, "s2", 0x10001 if MAP == 0 else 0x10006)
    g.salu("s_add_u32", T0, T0, T1)
    g.salu("s_bfe_u32", T1, "s2", 0x10002)
    g.salu("s_mulk_i32", T1, 224)
    g.salu("s_add_u32", T0, T0, T1)
    g.salu("s_mulk_i32", T0, 384)
    g.salu("s_lshl_b32", T1, S_FC, 11)
    g.salu("s_sub_u32", T0, T0, T1)
    g.salu("s_lshl_b32", S_XG, S_CP, 11)
    g.salu("s_lshl_b32", S_CP, S_CP, 8)
    g.salu("s_mul_i32", T1, S_RP, S_W)
    g.salu("s_add_u32", T1, T1, S_ORG)
    g.salu("s_add_u32", S_ORG, S_ORG, T0)
    if int(os.environ.get("ZROW", 1)):
        g.salu("s_cmp_le_u32", None, T1, S_XB[0])
        g.salu("s_cselect_b32", S_XB[0], T1, 0x70000000)
    else:
        g.salu("s_min_i32", S_XB[0], S_XB[0], T1)
        g.salu("s_max_i32", S_XB[0], S_XB[0], 0)
    g.salu("s_add_u32", S_XB[0], S_XB[0], T0)
    g.salu("s_add_u32", T1, T1, T0)
    g.salu("s_lshl2_add_u32", S_XB[1], S_RP, T1)
    g.salu("s_mul_i32", S_XL, S_W, ROW)
    g.salu("s_mul_i32", S_STG, S_W, STGW)
    g.salu("s_add_u32", S_STG, S_STG, STG)
    g.salu("s_mul_i32", S_96, S_W, 96)
    for srd, size in ((SX, 19267584), (SW, 221184)):
        g.salu("s_mov_b32", f"s{srd + 2}", size)
        g.salu("s_mov_b32", f"s{srd + 3}", 0x20000)
    consts_early(g)
    if FORCE_SAFE:
        scalars2(g)
    g.p.build(inorder=True)
    s.run(g.p)
    if SPF:
        s.raw("    s_lshr_b32 s66, s2, 3")
        s.raw(f"    s_lshl2_add_u32 s66, s66, {S_W}")
        s.raw("    s_mulk_i32 s66, 1728")
    s.raw("    s_waitcnt lgkmcnt(0)")
    if SPF == 1:
        for i in range(14):
            s.raw(f"    s_buffer_load_dword s47, s[{SW}:{SW + 3}], s66 offset:{128 * i}")


def tune(s, g, seed=None, quiet=False):
    seed = int(os.environ.get("SEED", 0)) if seed is None else seed
    rnd = random.Random(seed)
    sig = float(os.environ.get("SIG", 40))
    lst = None
    best = None
    for it in range(int(os.environ.get("ITERS", 4))):
        c = copy.deepcopy(s)
        c.mstamps = set()
        c.run(g.p, None, lst)
        if not quiet:
            sys.stderr.write(f"pass {it}: {c.t}\n")
        if best is None or c.t < best[0]:
            best = (c.t, lst)
        lst = c.deadlines(g.p, float(os.environ.get("RATE", 16)))
        if seed:
            tj = {}
            for o in g.p.ops:
                k = (o.tag, o.kind)
                if k not in tj:
                    tj[k] = rnd.gauss(0, sig)
                lst[o] += tj[k]
    return best


def gen():
    s = Sched()
    prologue(s)
    nst = [1]

    def stampfn(sc, op):
        k = nst[0]
        nst[0] += 1
        sc.raw(f"    s_memtime s[{70 + 2 * k}:{71 + 2 * k}]")

    if FORCE_SAFE:
        s.raw("    s_branch L_safe2")
    g = body(False)
    if PROF and PROF != "1":
        want = PROF.split(",")
        for o in g.p.ops:
            o.stamp = None
        if PROF[0] == "#":
            d = [o for o in g.p.ops if o.kind == "dma"]
            for i in range(13):
                d[int(want[0][1:]) + i * int(want[1])].stamp = "d"
            want = []
        if PROF[0] == "@":
            s.mstamps = {int(want[0][1:]) + i * int(want[1]) for i in range(13)}
            want = []
        for w in want:
            t, k = (w.split(":") + ["mfma"])[:2]
            last = t.endswith("$")
            t = t.rstrip("$")
            c = [o for o in g.p.ops if o.tag == t and o.kind == k]
            c[-1 if last else 0].stamp = w
    g.p.build()
    best = tune(s, g)
    s.run(g.p, stampfn if PROF else None, best[1])
    sys.stderr.write(f"fast: model cycles {s.t} mfma {s.nmf} ({16 * s.nmf}) stats {s.stats}\n")
    sys.stderr.write("marks: " + " ".join(f"{n}@{t}/{16 * m}" for n, t, m in s.marks) + "\n")
    if os.environ.get("LOSS"):
        mf = sorted((o for o in g.p.ops if o.kind == "mfma"), key=lambda o: o.t)
        W = int(os.environ["LOSS"])
        for i in range(0, len(mf) - 1, W):
            seg = mf[i:i + W + 1]
            tags = []
            for o in seg:
                if o.tag not in tags:
                    tags.append(o.tag)
            cost = {"mfma": 8, "valu": 4, "trans": 8, "dsr": 4, "dma": 4, "dsw": 12, "vst": 16}
            busy = sum(cost.get(o.kind, 0) for o in g.p.ops if seg[0].t <= o.t < seg[-1].t)
            sys.stderr.write(f"  {i:5d} t={seg[0].t:6d} idle={seg[-1].t - seg[0].t - busy:5d} loss={seg[-1].t - seg[0].t - 16 * (len(seg) - 1):5d} {' '.join(tags)}\n")
    sys.stderr.write("smarks: " + " ".join(str(t) for t in s.smarks) + "\n")
    if PROF:
        k = nst[0]
        s.raw(f"    s_memtime s[{70 + 2 * k}:{71 + 2 * k}]")
        s.raw("    s_waitcnt vmcnt(0)")
        s.raw(f"    s_memtime s[{72 + 2 * k}:{73 + 2 * k}]")
        s.raw("    s_waitcnt lgkmcnt(0)")
    if EXFIL:
        e = int(EXFIL)
        e = e if e >= 0 else k + 2 + e
        s.raw(f"    s_sub_u32 s50, s{70 + 2 * e}, s70")
        s.raw("    s_mul_hi_u32 s50, s50, 0x1999999a")
        s.raw("    s_add_u32 s50, s50, s100")
        s.raw("    s_add_u32 s50, s50, 4000")
        s.raw("L_spin:")
        s.raw("    s_memrealtime s[98:99]")
        s.raw("    s_waitcnt lgkmcnt(0)")
        s.raw("    s_sub_u32 s51, s50, s98")
        s.raw("    s_cmp_gt_i32 s51, 0")
        s.raw("    s_cbranch_scc1 L_spin")
    elif PROF:
        if RT:
            s.raw("    s_memrealtime s[98:99]")
            s.raw("    s_getreg_b32 s96, hwreg(HW_REG_XCC_ID)")
            s.raw("    s_waitcnt lgkmcnt(0)")
        s.raw("    s_nop 7")
        for i in range(16 if RT else k + 2):
            s.raw(f"    v_mov_b32 v{i}, s{70 + 2 * i}")
        s.raw("    s_lshl_b32 s50, s2, 2")
        s.raw(f"    s_add_u32 s50, s50, {S_W}")
        s.raw("    s_lshl_b32 s50, s50, 6")
        s.raw("    s_add_u32 s50, s50, 0x100000")
        s.raw("    v_mov_b32 v20, s50")
        for i in range(4):
            s.raw(f"    buffer_store_dwordx4 v[{4 * i}:{4 * i + 3}], v20, s[{SWS}:{SWS + 3}], 0 offen offset:{16 * i}")
    s.raw("    s_nop 4")
    s.raw(f"    s_cmp_lg_u32 {S_BAD}, 0")
    s.raw("    s_cbranch_scc1 L_safe")
    s.raw("L_exit:")
    s.raw("    s_endpgm")
    s.raw("L_safe:")
    s.raw("    s_waitcnt vmcnt(0) lgkmcnt(0)")
    s.raw("    s_nop 7")
    s.raw("    s_barrier")
    s2 = Sched()
    g = G()
    consts_early(g)
    g.p.build(inorder=True)
    s2.run(g.p)
    s2.raw("L_safe2:")
    g = body(True)
    g.p.build()
    s2.run(g.p)
    s2.raw("    s_endpgm")
    sys.stderr.write(f"safe: model cycles {s2.t} mfma {s2.nmf} stats {s2.stats}\n")

    head = f"""; Fused DiNAT neighborhood attention (QKV proj + 7x7 dilated NA + out proj), one 14x14 query tile per workgroup,
; @launch grid=(256,1,1) block=(256,1,1) lds={LDS_TOTAL}
.amdgcn_target "amdgcn-amd-amdhsa--gfx950"
.text
.globl {NAME}_kernel
.p2align 12
.p2align 8
.type {NAME}_kernel,@function
{NAME}_kernel:
"""
    tail = f""".section .rodata,"a"
.p2align 6
.amdhsa_kernel {NAME}_kernel
  .amdhsa_next_free_vgpr 512
  .amdhsa_next_free_sgpr 102
  .amdhsa_accum_offset 256
  .amdhsa_group_segment_fixed_size 0
  .amdhsa_kernarg_size 56
  .amdhsa_user_sgpr_count 2
  .amdhsa_user_sgpr_kernarg_segment_ptr 1
  .amdhsa_system_sgpr_workgroup_id_x 1
.end_amdhsa_kernel
"""
    if HOP:
        add_stubs(s, head, s2.text() + tail)
    if os.environ.get("NS_STAMPS"):
        s.lines = [l.replace("s_memtime", "s_memrealtime") for l in s.lines]
    return head + s.text() + s2.text() + tail


def add_stubs(s, head, rest):
    import re
    import subprocess
    import tempfile
    lines = s.text().split("\n")[:-1]
    fake = "".join(f"L_h{i}:\n" for i in range(1, 5))
    with tempfile.TemporaryDirectory() as d:
        open(d + "/a.s", "w").write(head + "\n".join(lines) + "\n" + fake + rest)
        subprocess.run(["clang", "-x", "assembler", "-target", "amdgcn-amd-amdhsa", "-mcpu=gfx950",
                        "-c", d + "/a.s", "-o", d + "/a.o"], check=True)
        dis = subprocess.run(["llvm-objdump", "-d", d + "/a.o"], capture_output=True, text=True).stdout
    offs = [0x300 + int(m.group(1), 16) for m in re.finditer(r"// ([0-9A-F]{12}):", dis)]
    ins = [i for i, l in enumerate(lines) if not l.strip().endswith(":")]
    pos = []
    page = 1
    k = 0
    while k < len(ins):
        o = offs[k] + 4 * len(pos)
        if o >= 4096 * page:
            best = k
            j = k
            while j < len(ins) and offs[j] + 4 * len(pos) <= 4096 * page + 56:
                if "v_mfma" in lines[ins[j - 1]] and lines[ins[j]].strip().startswith("v_"):
                    best = j
                    break
                j += 1
            pos.append(ins[best])
            page += 1
            k = best
        k += 1
    n = len(pos)
    assert n >= 4
    for p in reversed(range(n)):
        tgt = f"L_h{p + 5}" if p + 5 <= n else "L_hback"
        lines[pos[p]:pos[p]] = [f"L_h{p + 1}:", f"    s_cbranch_execz {tgt}"]
    s.lines = lines


if __name__ == "__main__":
    out = sys.argv[1] if len(sys.argv) > 1 else "k9.s"
    open(out, "w").write(gen())
```

```python
import os
import sys

VALU = ("valu", "trans", "perm", "rfl")
DS = ("dsr", "dsw")
VM = ("dma", "vld", "vst")
MEM = DS + VM


def V(a, n=1):
    return [f"v{i}" for i in range(a, a + n)]


def A(a, n=1):
    return [f"a{i}" for i in range(a, a + n)]


def rs(regs):
    if len(regs) == 1:
        return regs[0]
    p = regs[0][0]
    lo, hi = int(regs[0][1:]), int(regs[-1][1:])
    assert hi - lo + 1 == len(regs) and all(r[0] == p for r in regs), regs
    return f"{p}[{lo}:{hi}]"


class Op:
    __slots__ = ("idx", "text", "kind", "rd", "wr", "lds", "rank", "srcc", "mop", "size", "preds", "succs", "npred",
                 "t", "w", "tc", "tag", "nb", "done", "stamp", "gap", "lat", "xd", "barred", "barby", "xw", "key", "n", "nm")

    def __init__(self, text, kind, rd=(), wr=(), lds=None, rank=1, srcc=None, mop=None, size=0, tag="", nb=0):
        self.text, self.kind = text, kind
        self.rd, self.wr = set(rd), set(wr)
        self.lds, self.rank, self.srcc, self.mop, self.size, self.tag, self.nb = lds, rank, srcc, mop, size, tag, nb
        self.preds, self.succs = {}, []
        self.done = False
        self.stamp = None
        self.gap = 0
        self.lat = 0
        self.xd = []
        self.barred = False


def edge_req(p, c, typ, reg):
    st, cy, wk = 0, 0, None
    pk, ck = p.kind, c.kind
    sreg = reg[0] not in "va" or reg == "vcc"
    if reg.startswith("gate") or reg == "dmo":
        return 0, 0, None
    if pk in VALU:
        if typ == "RAW":
            if sreg:
                st = 5 if ck in MEM else 2
                if ck == "rfl":
                    st = 4
            else:
                if ck == "mfma" or ck == "perm":
                    st = 2
                elif ck == "rfl":
                    st = 1
                elif pk == "trans" and ck != "trans":
                    st = 1
            if reg == "exec":
                st = 5
    elif pk == "mfma":
        if typ in ("RAW", "WAW"):
            if ck == "mfma":
                if c.srcc is not None and reg in c.srcc and reg not in (c.rd - set(c.srcc)):
                    same = tuple(c.srcc) == tuple(sorted((r for r in p.wr if r[0] != 'g'), key=lambda r: int(r[1:]))) and c.mop == p.mop
                    st = 0 if same else 6
                elif typ == "WAW":
                    st = 6
                else:
                    st = 8
            else:
                st = 8
        elif typ == "WAR":
            if ck in VALU and p.srcc is not None and reg in p.srcc:
                st = 3
    elif pk == "salu":
        if typ == "RAW" and reg == "m0" and ck == "dma":
            st = 1
        if typ == "RAW" and reg == "exec" and ck in ("mfma", "perm", "rfl"):
            st = 4
    elif pk == "dsr":
        if typ in ("RAW", "WAW"):
            wk = "lg"
    elif pk == "vld":
        if typ in ("RAW", "WAW"):
            wk = "vm"
    elif pk == "vst":
        if typ == "WAR" and p.size >= 12 and not sreg:
            st = 2
        if typ == "RAW":
            wk = "vm"
    return st, cy, wk


class Prog:
    def __init__(self):
        self.ops = []

    def add(self, op):
        op.idx = len(self.ops)
        self.ops.append(op)
        return op

    @staticmethod
    def _edge(p, c, st=0, cy=0, wk=None):
        if p is c:
            return
        o = c.preds.get(p)
        if o is None:
            c.preds[p] = [st, cy, wk]
            p.succs.append(c)
        else:
            o[0] = max(o[0], st)
            o[1] = max(o[1], cy)
            o[2] = o[2] or wk

    def build(self, inorder=False):
        lw, rdrs = {}, {}
        ldsops, bars = [], []
        beta = {}
        prev = None
        for c in self.ops:
            for r in c.rd:
                p = lw.get(r)
                if p is not None:
                    self._edge(p, c, *edge_req(p, c, "RAW", r))
            for r in c.wr:
                p = lw.get(r)
                if p is not None:
                    self._edge(p, c, *edge_req(p, c, "WAW", r))
                for p in rdrs.get(r, ()):
                    self._edge(p, c, *edge_req(p, c, "WAR", r))
            for r in c.rd:
                rdrs.setdefault(r, []).append(c)
            for r in c.wr:
                lw[r] = c
                rdrs[r] = []
            if c.kind == "bar":
                if bars:
                    self._edge(bars[-1], c)
                bars.append(c)
            if c.lds:
                for p in ldsops:
                    for (lo, hi, rw, cls, plo, phi) in c.lds:
                        for (lo2, hi2, rw2, cls2, plo2, phi2) in p.lds:
                            if rw == "r" and rw2 == "r":
                                continue
                            if cls is not None and cls == cls2:
                                if plo < phi2 and plo2 < phi:
                                    wk = None
                                    if p.kind == "dma":
                                        wk = "vm"
                                    elif c.kind == "dma":
                                        wk = "lg"
                                    self._edge(p, c, 0, 0, wk)
                                continue
                            if lo < hi2 and lo2 < hi:
                                b = beta.get(p)
                                if b is None:
                                    assert bars and bars[-1].idx > p.idx, \
                                        f"cross-wave LDS hazard without barrier:\n  {p.tag}: {p.text}\n  {c.tag}: {c.text}"
                                    b = beta[p] = bars[-1]
                                    self._edge(p, b, 0, 0, "vm" if p.kind == "dma" else "lg")
                                self._edge(p, c)
                                c.xd.append(p)
                ldsops.append(c)
            if inorder and prev is not None:
                self._edge(prev, c)
            prev = c


class Sched:
    LDS_LAT = int(os.environ.get("LDS_LAT", 130))
    VM_LAT = int(os.environ.get("VM_LAT", 800))
    VM_PER = int(os.environ.get("VM_PER", 70))
    VM_MAX = int(os.environ.get("VM_MAX", 12))
    VM_GAP = int(os.environ.get("VM_GAP", 64))
    BAR_COST = int(os.environ.get("BAR_COST", 30))
    VM_MARGIN = int(os.environ.get("VM_MARGIN", 800))
    LG_MARGIN = int(os.environ.get("LG_MARGIN", 80))
    LAZY = int(os.environ.get("LAZY", 60))
    ST_SLACK = int(os.environ.get("ST_SLACK", 100000))
    DD = int(os.environ.get("DD", 1))
    DDP = int(os.environ.get("DDP", 3))
    OPP = int(os.environ.get("OPP", 20))
    TA_Q = int(os.environ.get("TA_Q", 0))

    def __init__(self):
        self.lines = []
        self.t = 0
        self.tmem = 0
        self.vb = 0
        self.mf = 0
        self.msize = 4
        self.last = "salu"
        self.W = 0
        self.lgq, self.vmq = [], []
        self.vm_tc = 0
        self.vm_next = 0
        self.ta = [0] * 8
        self.lds_tc = 0
        self.stats = {}
        self.nmf = 0
        self.marks = []
        self.unbar = []
        self.smarks = []
        self.mstamps = set()

    def mfree(self, size):
        return self.mf + (4 if size != self.msize else 0)

    def t_issue(self, kind, size=0):
        t0 = self.t
        if kind in VALU or kind == "mfma":
            t0 = max(t0, self.vb)
        if kind == "mfma":
            t0 = max(t0, self.mfree(size))
        if kind in MEM:
            t0 = self.tmem if self.last in ("dsr", "dma", "vld") and self.t - self.tmem == 3 else max(t0, self.tmem)
            if self.last in VALU:
                t0 += 4
        return t0

    def after(self, kind, size, t0):
        vb = self.vb
        if kind == "mfma":
            return t0 + 4, t0 + 4, t0 + 2 * size
        if kind == "trans":
            return t0 + 8, t0 + 8, t0 + 8
        if kind in VALU:
            return t0 + 4, t0 + 4, t0 + 4
        if kind in ("dsr", "dma", "vld"):
            d = 8 + (self.DDP if self.last in ("dsr", "dma", "vld") else 0)
            return t0 + d, t0 + d - 3, max(vb, t0 + d)
        if kind in ("dsw", "vst"):
            d = {4: 12, 8: 16, 12: 28, 16: 40}[size] if kind == "dsw" else {4: 12, 8: 16, 12: 20, 16: 24}[size]
            return t0 + d, t0 + d - 4, max(vb, t0 + d)
        return t0 + 4, t0 + 4, vb

    def _emit(self, text, kind, size=0, ws=1):
        t0 = self.t_issue(kind, size)
        self.t, self.tmem, self.vb = self.after(kind, size, t0)
        if kind == "mfma":
            self.msize = size
            self.mf = t0 + 16
            self.nmf += 1
        if ws > 1:
            self.t += 4 * (ws - 1)
        self.last = kind
        self.W += ws
        self.lines.append("    " + text)
        self.stats[kind] = self.stats.get(kind, 0) + 1
        return t0

    def raw(self, text):
        self.lines.append(text)

    def wait(self, lg=None, vm=None):
        parts = []
        tt = 0
        if vm is not None:
            vm = min(vm, 63)
            k = len(self.vmq) - vm
            for o in self.vmq[:k]:
                o.done = True
                tt = max(tt, o.tc)
            self.vmq = self.vmq[k:]
            parts.append(f"vmcnt({vm})")
        if lg is not None:
            lg = min(lg, 15)
            k = len(self.lgq) - lg
            for o in self.lgq[:k]:
                o.done = True
                tt = max(tt, o.tc)
            self.lgq = self.lgq[k:]
            parts.append(f"lgkmcnt({lg})")
        self._emit("s_waitcnt " + " ".join(parts), "wait")
        if tt > self.t:
            self.stats["stall"] = self.stats.get("stall", 0) + tt - self.t
            self.t = tt

    def issue(self, op):
        t0 = self._emit(op.text, op.kind, op.size)
        op.t, op.w, op.n = t0, self.W, len(self.lines)
        if op.kind in DS:
            occ = (4 * len(op.wr) if op.kind == "dsr" else 3 * op.size)
            op.tc = self.lds_tc = max(t0 + self.LDS_LAT, self.lds_tc + occ)
            self.lgq.append(op)
        elif op.kind in VM:
            per = self.VM_PER if op.size >= 8 else 16
            self.vm_tc = max(t0 + (op.lat or self.VM_LAT), self.vm_tc + per)
            op.tc = self.vm_tc
            self.vmq.append(op)
            if op.size >= 8:
                self.ta.append(max(self.ta[-1], t0) + (op.gap or self.VM_GAP))
                self.vm_next = self.ta[-1 - self.TA_Q]
        if op.lds:
            self.unbar.append(op)
        if op.kind == "bar":
            for o in self.unbar:
                if o.done:
                    o.barred = True
                    o.barby = op
            self.unbar = [o for o in self.unbar if not o.barred]
            self.t += self.BAR_COST
        if op.kind == "mfma" and self.nmf in self.mstamps:
            op.stamp = f"m{self.nmf}"
        if op.stamp is not None:
            self.smarks.append(t0)
        if op.kind == "bar" or op.stamp is not None:
            self.marks.append((op.tag, t0, self.nmf))

    def block(self, op):
        st = 0
        ws = []
        for p, (s, cy, wk) in op.preds.items():
            if s:
                st = max(st, s - (self.W - p.w))
            if wk and not p.done:
                ws.append((wk, p))
        return st, ws

    def vm_outstanding(self):
        return sum(1 for o in self.vmq if o.tc > self.t and o.size >= 8)

    def run(self, prog, stampfn=None, lst=None):
        ops = prog.ops
        for o in ops:
            o.npred = len(o.preds)
            o.done = o.barred = False
            o.barby = None
            o.xw = list(o.xd)
            o.key = (lst[o], o.idx) if (lst is not None and o.kind != "mfma") else (o.rank, o.idx)
        avail = [o for o in ops if o.npred == 0]
        left = len(ops)
        nmf0 = self.nmf

        def go(o):
            nonlocal left
            self.issue(o)
            avail.remove(o)
            left -= 1
            for s in o.succs:
                s.npred -= 1
                if s.npred == 0:
                    avail.append(s)
                    s.nm = self.nmf - nmf0
            if stampfn and o.stamp is not None:
                stampfn(self, o)

        tm = [0]

        def fits(kind, size):
            t0 = self.t_issue(kind)
            t, _, vb = self.after(kind, size, t0)
            return max(t, vb) <= tm[0] + (self.DD * (1 + self.DDP) if kind in MEM else 0)

        while left:
            avail.sort(key=lambda o: o.key)
            ready, wblocked, sblocked = [], [], []
            for o in avail:
                if o.xw:
                    o.xw = [p for p in o.xw if not p.barred]
                    if o.xw:
                        continue
                st, ws = self.block(o)
                if ws:
                    wblocked.append((o, ws))
                elif st > 0:
                    sblocked.append((o, st))
                elif o.nb > self.t or (o.kind in VM and o.size >= 8 and
                                       (self.vm_outstanding() >= self.VM_MAX or self.vm_next > self.t + 4)):
                    continue
                elif o.kind in DS and len(self.lgq) >= 14 and self.lgq[-14].tc > self.t:
                    continue
                else:
                    ready.append(o)
            mf = [o for o in ready if o.kind == "mfma"]
            fl = [o for o in ready if o.kind != "mfma"]
            mf_soon = bool(mf) or any(o.kind == "mfma" for o, _ in sblocked) or \
                any(o.kind == "mfma" and all(p.tc <= self.mf for _, p in ws) for o, ws in wblocked)
            lgn = vmn = None
            cwkey = None
            cwmf = False
            tp = (lst["t0"] + lst["rate"] * (self.nmf - nmf0)) if lst is not None else 0
            for o, ws in wblocked:
                if o.nb > self.t or any(p.tc > self.t for _, p in ws):
                    continue
                if mf and lst is not None and lst[o] > tp + self.LAZY and \
                        any(p.tc + (self.VM_MARGIN if wk == "vm" else self.LG_MARGIN) > self.t for wk, p in ws):
                    continue
                if o.kind == "mfma":
                    cwmf = True
                    k = (lst[o] - 20, o.idx) if lst is not None else (o.rank + 5, o.idx)
                else:
                    k = o.key
                cwkey = k if cwkey is None else min(cwkey, k)
                for wk, p in ws:
                    if wk == "lg":
                        lgn = max(lgn or 0, self.lgq.index(p) + 1)
                    else:
                        vmn = max(vmn or 0, self.vmq.index(p) + 1)
            cw = None
            if lgn or vmn:
                lg = vm = None
                if lgn:
                    k = max(lgn, sum(1 for o in self.lgq if o.tc + self.LG_MARGIN <= self.t))
                    lg = len(self.lgq) - k
                    if lg > 15:
                        lg = None
                if vmn:
                    vm = len(self.vmq) - vmn
                if lg is not None or vm is not None:
                    cw = (lg, vm)
            if mf and self.msize == 2:
                same = [o for o in mf if o.size == 2]
                if same:
                    mf = same
            tm[0] = self.mfree(mf[0].size if mf else 4)
            if mf and max(self.t, self.vb) >= tm[0]:
                go(mf[0])
                continue
            if cw and cwmf and not mf:
                self.wait(*cw)
                continue
            WAIT = "wait"
            cand = [(o.key, o) for o in fl] + ([(cwkey, WAIT)] if cw else [])
            cand.sort(key=lambda x: x[0])
            pick = None
            if mf_soon:
                kind = lambda o: "wait" if o is WAIT else o.kind
                if self.last == "mfma":
                    cap, chosen = (tm[0] - self.t - 4) // 4, []
                    for _, o in cand:
                        k = kind(o)
                        if k in ("salu", "bar", "wait"):
                            continue
                        u = 2 if k in ("trans", "dsw", "vst") else 1
                        if u <= cap:
                            chosen.append(o)
                            cap -= u
                        if cap == 0:
                            break
                    if len(chosen) == 1 and cap == 1 and kind(chosen[0]) in VALU:
                        o = chosen[0]
                        chain = any(s_.npred == 1 and s_.kind == "valu" and s_.preds[o][0] == 0 for s_ in o.succs)
                        tr = [x for _, x in cand if kind(x) == "trans"]
                        if tr and not chain and (lst is None or lst[o] > tp + 16):
                            chosen = [tr[0]]
                    mem = [o for o in chosen if kind(o) in MEM]
                    sc = [o for _, o in cand if kind(o) in ("salu", "bar", "wait")]
                    key = lambda o: cwkey if o is WAIT else o.key
                    if not mem and not sc and self.OPP >= 0 and self.msize == 4:
                        k = sum(1 for o in self.lgq if o.tc + self.OPP <= self.t)
                        if k and len(self.lgq) - k <= 15 and any(o.kind == "dsr" for o in self.lgq[:k]):
                            self.wait(lg=len(self.lgq) - k)
                            continue
                    if self.msize == 2 and chosen and not mem and \
                            not (sc and (lst is None or key(sc[0])[0] <= tp + 64)):
                        pick = chosen[0]
                    elif sc and (not mem or key(sc[0]) < key(mem[0])):
                        pick = sc[0]
                    elif mem:
                        pick = mem[0]
                    elif chosen:
                        pick = chosen[0]
                else:
                    fit = [o for _, o in cand if fits(kind(o), 0 if o is WAIT else o.size)]
                    if fit:
                        pick = fit[0]
                        two = fits("trans", 0)
                        if two and kind(pick) in VALU and kind(pick) != "trans":
                            o = pick
                            chain = any(s_.npred == 1 and s_.kind == "valu" and s_.preds[o][0] == 0 for s_ in o.succs)
                            plain = [x for x in fit if kind(x) in VALU and kind(x) != "trans"]
                            tr = [x for x in fit if kind(x) == "trans"]
                            if tr and len(plain) < 2 and not chain and (lst is None or lst[o] > tp + 16):
                                pick = tr[0]
                        elif kind(pick) in ("salu", "bar", "wait", "dsr", "dma", "vld") and \
                                (lst is not None and (cwkey if pick is WAIT else pick.key)[0] > tp + 64):
                            vs = [x for x in fit if kind(x) in VALU]
                            if vs:
                                pick = vs[0]
                if pick is None and mf:
                    pick = mf[0]
            if pick is None and cand:
                pick = cand[0][1]
            if pick is WAIT:
                self.wait(*cw)
                continue
            if pick is not None:
                go(pick)
                continue
            if sblocked:
                n = min(st for _, st in sblocked)
                self._emit(f"s_nop {n - 1}", "nop", ws=n)
                self.stats["nopws"] = self.stats.get("nopws", 0) + n
                continue
            cands = []
            for o, ws in wblocked:
                cands.append(max(p.tc for _, p in ws))
            for o in avail:
                if o.nb > self.t:
                    cands.append(o.nb)
            for o in self.vmq + self.lgq:
                if o.tc > self.t:
                    cands.append(o.tc)
            cands.append(self.vm_next - 4)
            cands = [c for c in cands if c > self.t]
            if cands:
                nt = min(cands)
                self.stats["stall"] = self.stats.get("stall", 0) + nt - self.t
                self.t = nt
            else:
                self.wait(lg=15)

    def deadlines(self, prog, rate=16.0):
        ops = prog.ops
        mf = sorted((o for o in ops if o.kind == "mfma"), key=lambda o: o.t)
        end = mf[0].t + rate * len(mf)
        lst = {o: end for o in ops}
        for i, o in enumerate(mf):
            lst[o] = mf[0].t + rate * i
        extra = {}
        for c in ops:
            for p in c.xd:
                if p.barby is not None:
                    extra.setdefault(p.barby, set()).add(c)
                    extra.setdefault(p, set()).add(p.barby)
        for o in sorted(ops, key=lambda o: -o.n):
            v = lst[o]
            for c in o.succs:
                st, cy, wk = c.preds[o]
                lat = 4 + 5 * st
                if wk == "lg":
                    lat = self.LDS_LAT + 20
                elif wk == "vm":
                    lat = (o.lat or self.VM_LAT) + 100
                elif o.kind in VM and c.kind in VM:
                    lat = max(o.gap or self.VM_GAP, self.VM_PER)
                v = min(v, lst[c] - lat)
            for c in extra.get(o, ()):
                lat = 8 if o.kind == "bar" else (self.LDS_LAT + 20 if o.kind in DS else (o.lat or self.VM_LAT) + 100)
                v = min(v, lst[c] - lat)
            if o.kind == "vst":
                v = min(v, mf[0].t + rate * o.nm + self.ST_SLACK)
            lst[o] = v
        lst["t0"], lst["rate"] = mf[0].t, rate
        return lst

    def settle(self):
        self.wait(lg=0, vm=None)
        self._emit("s_nop 7", "nop", ws=8)

    def text(self):
        return "\n".join(self.lines) + "\n"
```

```python
import os, sys, random, copy, time
os.environ.setdefault("BAR_COST", "30")
import k9
from sched import Sched
from multiprocessing import Pool

def evaluate(order):
    os.environ["ORDER"] = " ".join(order)
    try:
        g = k9.body(False)
        g.p.build()
        s0 = Sched(); s0.t = 440
        lst, best = None, 1 << 30
        for it in range(3):
            c = copy.deepcopy(s0)
            c.run(g.p, None, lst)
            best = min(best, c.t)
            lst = c.deadlines(g.p)
        return best
    except (AssertionError, KeyError, IndexError, ValueError) as e:
        return 1 << 30

def mutate(order, rnd):
    k = order.index("X3") + 1
    return order[:k] + mutate1(order[k:], rnd)

def mutate1(order, rnd):
    o = list(order)
    r = rnd.random()
    if r < 0.7:
        i = rnd.randrange(len(o)); d = rnd.choice([-4, -3, -2, -1, -1, 1, 1, 2, 3, 4])
        t = o.pop(i); o.insert(max(0, min(len(o), i + d)), t)
    elif r < 0.82:
        c = [i for i, t in enumerate(o) if t[0] in "QP"]
        i = rnd.choice(c); o[i] = ("P" if o[i][0] == "Q" else "Q") + o[i][1:]
        if rnd.random() < 0.5:
            t = o.pop(i); o.insert(max(0, min(len(o), i + rnd.randint(-6, 6))), t)
    elif r < 0.88:
        c = [i for i, t in enumerate(o) if t[0] in "bR"]
        o.pop(rnd.choice(c))
    elif r < 0.93:
        o.insert(rnd.randrange(len(o)), "bx")
    else:
        c = [i for i, t in enumerate(o) if t[0] == "O"]
        i = rnd.choice(c); base = o[i].split("<")[0]
        prev = [t[1:] for t in o[:i] if t[0] == "A"]
        o[i] = base if rnd.random() < 0.4 or not prev else f"{base}<{prev[-1]}.{rnd.choice(['0', '1', '2', '3', '4', '5', 'w0', 'w2'])}"
    return o

if __name__ == "__main__":
    order = sys.argv[1].split()
    T = float(sys.argv[2])
    rnd = random.Random(int(sys.argv[3]) if len(sys.argv) > 3 else 0)
    n = os.cpu_count()
    with Pool(n) as p:
        cur = evaluate(order); print(cur, flush=True)
        t0 = time.time()
        while time.time() - t0 < T:
            cands = []
            while len(cands) < 2 * n:
                c = mutate(order, rnd)
                if rnd.random() < 0.3: c = mutate(c, rnd)
                cands.append(c)
            res = p.map(evaluate, cands)
            b = min(range(len(res)), key=lambda i: res[i])
            if res[b] <= cur:
                if res[b] < cur: print(res[b], " ".join(cands[b]), flush=True)
                cur, order = res[b], cands[b]
```
